```python
import torch

def _softmax(x, axis=-1):
    return torch.softmax(x, dim=axis)
def _gelu(x):
    return torch.nn.functional.gelu(x, approximate="tanh")
def _silu(x):
    return torch.nn.functional.silu(x)
def _sigmoid(x):
    return torch.sigmoid(x)
def _layernorm(x, axis=-1, eps=1e-5):
    m = x.mean(dim=axis, keepdim=True)
    v = x.var(dim=axis, keepdim=True, unbiased=False)
    return (x - m) / torch.sqrt(v + eps)
def _scatter_add(tgt, idx, src, axis=0):
    return tgt.clone().index_add_(axis, idx, src)
def _segment_sum(src, seg, n):
    out = torch.zeros((n,) + src.shape[1:], dtype=src.dtype)
    return out.index_add_(0, seg, src)
def _pad(x, pw):
    flat = tuple(v for pair in reversed(pw) for v in pair)
    return torch.nn.functional.pad(x, flat)

kernel_name = 'gated_mix__sliding_block_cached__geglu_ffn__decode'

def setup_inputs():

    _w = (lambda a: (lambda t: t.to(torch.bfloat16) if t.is_floating_point() else t)(torch.as_tensor(a)))
    def _A_setup():
        B, Sq, D = 2, 1, 640
        Hq, Hkv, Sk, Dh = 32, 32, 8192, 128
        assert Hq % Hkv == 0, (Hq, Hkv)
        return {
            "x": _w((lambda *s: torch.randn(*s, dtype=torch.bfloat16) * 0.05)(B, Sq, D)),
            "k_cache": _w((lambda *s: torch.randn(*s, dtype=torch.bfloat16) * 6.4)(B, Hkv, Sk, Dh)),
            "v_cache": _w((lambda *s: torch.randn(*s, dtype=torch.bfloat16) * 0.2)(B, Hkv, Sk, Dh)),
            "wq": _w((lambda *s: torch.randn(*s, dtype=torch.bfloat16) * 6.4)(D, Hq * Dh) * (D ** -0.5)),
            "wo": _w((lambda *s: torch.randn(*s, dtype=torch.bfloat16) * 0.2)(Hq * Dh, D) * ((Hq * Dh) ** -0.5)),
        }
    _A_in = _A_setup()

    def _B_setup():
        B, S, D, F = 2, 1, 640, 1728
        return {
            "x": _w((lambda *s: torch.randn(*s, dtype=torch.bfloat16) * 0.05)(B, S, D)),
            "w_gate": _w((lambda *s: torch.randn(*s, dtype=torch.bfloat16) * 0.05)(D, F)),
            "w_up": _w((lambda *s: torch.randn(*s, dtype=torch.bfloat16) * 0.05)(D, F)),
            "w_down": _w((lambda *s: torch.randn(*s, dtype=torch.bfloat16) * 0.05)(F, D)),
        }
    _B_in = _B_setup()

    return {
        "A_x": _A_in["x"],
        "A_k_cache": _A_in["k_cache"],
        "A_v_cache": _A_in["v_cache"],
        "A_wq": _A_in["wq"],
        "A_wo": _A_in["wo"],
        "B_x": _B_in["x"],
        "B_w_gate": _B_in["w_gate"],
        "B_w_up": _B_in["w_up"],
        "B_w_down": _B_in["w_down"],
        "gate_w": _w((lambda *s: torch.randn(*s, dtype=torch.bfloat16) * 0.05)(640) * 16.0),
    }

def reference(A_x, A_k_cache, A_v_cache, A_wq, A_wo, B_x, B_w_gate, B_w_up, B_w_down, gate_w):
    def _A_ref(x, k_cache, v_cache, wq, wo):
        B, Sq, D = x.shape
        Hq, Dh = 32, 128
        Hkv, Sk = k_cache.shape[1], k_cache.shape[2]
        W = min(4096, max(256, Sk // 4))
        rep = Hq // Hkv
        q = (lambda x, *d: x.permute(*d))((x @ wq).reshape(B, Sq, Hq, Dh), 0, 2, 1, 3)
        k = (lambda x, n, axis: torch.repeat_interleave(x, n, dim=axis))(k_cache[:, :, Sk - W:, :], rep, axis=1)
        v = (lambda x, n, axis: torch.repeat_interleave(x, n, dim=axis))(v_cache[:, :, Sk - W:, :], rep, axis=1)
        scores = torch.einsum("bhqd,bhkd->bhqk", q, k) * (Dh ** -0.5)
        p = _softmax(scores, axis=-1)
        o = torch.einsum("bhqk,bhkd->bhqd", p, v)
        return (lambda x, *d: x.permute(*d))(o, 0, 2, 1, 3).reshape(B, Sq, Hq * Dh) @ wo

    def _B_ref(x, w_gate, w_up, w_down):
        return (_gelu(x @ w_gate) * (x @ w_up)) @ w_down

    x = A_x
    g = _sigmoid((x * gate_w).sum(-1, keepdims=True))
    a = _A_ref(x, A_k_cache, A_v_cache, A_wq, A_wo)
    b = _B_ref(x, B_w_gate, B_w_up, B_w_down)
    return g * a + (1 - g) * b
```

```python
KN = "gated_mix__sliding_block_cached__geglu_ffn__decode"
class Asm:
    def __init__(self):
        self.l = []
    def __call__(self, s):
        for x in s.strip("\n").split("\n"):
            self.l.append(x if x.rstrip().endswith(":") and not x.startswith(" ") else "    " + x.strip())
    def text(self):
        return "\n".join(self.l) + "\n"

def header(grid, block, lds):
    return f"""; @launch grid=({grid},1,1) block=({block},1,1) lds={lds}
.amdgcn_target "amdgcn-amd-amdhsa--gfx950"
.text
.globl {KN}_kernel
.p2align 8
.type {KN}_kernel,@function
{KN}_kernel:
"""
def footer(vgpr, sgpr=96, accum=None):
    if accum is None:
        accum = (vgpr + 3) // 4 * 4
        accum = min(accum, 256)
    return f""".section .rodata,"a"
.p2align 6
.amdhsa_kernel {KN}_kernel
  .amdhsa_next_free_vgpr {vgpr}
  .amdhsa_next_free_sgpr {sgpr}
  .amdhsa_accum_offset {accum}
  .amdhsa_group_segment_fixed_size 0
  .amdhsa_kernarg_size 104
  .amdhsa_user_sgpr_count 2
  .amdhsa_user_sgpr_kernarg_segment_ptr 1
  .amdhsa_system_sgpr_workgroup_id_x 1
  .amdhsa_float_denorm_mode_32 3
.end_amdhsa_kernel
"""
```

```python
import re
def regs(op):
    op = op.strip()
    neg = op.lstrip("-")
    if neg.startswith("abs(") or neg.startswith("|"): neg = neg.strip("|").replace("abs(", "").rstrip(")")
    m = re.fullmatch(r"([vsa])\[(\d+):(\d+)\]", neg)
    if m: return {f"{m.group(1)}{k}" for k in range(int(m.group(2)), int(m.group(3)) + 1)}
    m = re.fullmatch(r"([vsa])(\d+)", neg)
    if m: return {neg}
    if neg == "vcc": return {"vcc"}
    if neg in ("vcc_lo", "vcc_hi"): return {"vcc"}
    if neg in ("exec", "exec_lo", "exec_hi"): return {"exec"}
    if neg == "m0": return {"m0"}
    return set()
TRANS = ("v_exp_f32", "v_log_f32", "v_rcp_f32", "v_rsq_f32", "v_sqrt_f32", "v_sin_f32", "v_cos_f32")
class I:
    def __init__(s, line):
        s.line = line
        t = line.split(";")[0].strip()
        p = t.split(None, 1)
        s.mn = p[0]
        rest = p[1] if len(p) > 1 else ""
        ops = re.split(r",\s*(?![^\[]*\])", rest) if rest else []
        s.mods = ""
        if ops:
            last = ops[-1].split(None, 1)
            if len(last) > 1: ops[-1] = last[0]; s.mods = last[1]
        s.ops = ops
        mn = s.mn
        s.mfma = mn.startswith("v_mfma")
        s.valu = mn.startswith("v_") and not s.mfma
        s.trans = any(mn.startswith(x) for x in TRANS)
        s.dpp = "_dpp" in mn
        s.perml = mn.startswith("v_permlane")
        s.vmem = mn.startswith(("buffer_", "global_", "flat_"))
        s.ds = mn.startswith("ds_")
        s.salu = mn.startswith("s_")
        s.w = set(); s.r = set()
        R = [regs(o) for o in ops]
        if s.mfma:
            s.w = R[0]; s.a = R[1]; s.b = R[2]; s.c = R[3]; s.r = s.a | s.b | s.c
            s.passes = 8 if "32x32" in mn else (2 if "4x4x4" in mn else 4)
        elif s.valu:
            if s.perml: s.w = R[0] | R[1]; s.r = R[0] | R[1]
            elif mn.startswith(("v_add_co", "v_addc_co", "v_sub_co", "v_subb_co")):
                s.w = R[0] | R[1]; s.r = set().union(*R[2:])
            else:
                s.w = R[0]; s.r = set().union(*R[1:]) if len(R) > 1 else set()
                if mn.startswith(("v_fmac", "v_dot2c", "v_writelane")) or s.dpp: s.r |= R[0]
                if mn.startswith("v_cmpx"): s.w |= {"exec"}
        elif s.vmem:
            lds = "lds" in s.mods.split() or "_lds_" in mn
            store = "store" in mn or ("atomic" in mn)
            if lds: s.r = set().union(*R) | {"m0"}
            elif store: s.r = set().union(*R)
            else: s.w = R[0]; s.r = set().union(*R[1:])
            s.lds = lds
            s.widestore = set()
            if "store" in mn and ("x3" in mn or "x4" in mn):
                s.widestore = R[0] if mn.startswith("buffer") else R[1]
        elif s.ds:
            if mn.startswith(("ds_read", "ds_bpermute", "ds_permute", "ds_swizzle")) or "_rtn" in mn:
                s.w = R[0]; s.r = set().union(*R[1:])
            else: s.r = set().union(*R)
        elif s.salu:
            if mn.startswith(("s_cmp", "s_cbranch", "s_branch", "s_waitcnt", "s_nop", "s_barrier", "s_sleep", "s_setprio", "s_endpgm", "s_bitcmp")):
                s.r = set().union(*R) if R else set()
            elif R:
                s.w = R[0]; s.r = set().union(*R[1:]) if len(R) > 1 else set()
                if "saveexec" in mn: s.w |= {"exec"}
        s.states = 1
        if mn == "s_nop": s.states = int(ops[0], 0) + 1
def need(p, c):
    n = 0
    vg = lambda S: {x for x in S if x[0] in "va" and x != "vcc"}
    sg = lambda S: {x for x in S if x[0] == "s" or x == "vcc"}
    if p.valu:
        if c.mfma and vg(p.w) & c.r: n = max(n, 2)
        if c.dpp and vg(p.w) & c.r: n = max(n, 2)
        if c.perml and vg(p.w) & c.r: n = max(n, 2)
        if c.mn.startswith(("v_readlane", "v_readfirstlane")) and vg(p.w) & c.r: n = max(n, 1)
        if p.trans and c.valu and not c.trans and vg(p.w) & c.r: n = max(n, 1)
        if p.trans and (c.mfma or c.vmem or c.ds) and vg(p.w) & c.r: n = max(n, 2 if c.mfma else 1)
        if c.valu and sg(p.w) & c.r:
            n = max(n, 4 if c.mn.startswith(("v_readlane", "v_writelane")) else 2)
        if c.vmem and sg(p.w) & c.r: n = max(n, 5)
        if "exec" in p.w:
            if c.dpp: n = max(n, 5)
            if c.mfma or c.perml or c.mn.startswith(("v_readlane", "v_readfirstlane", "v_writelane")): n = max(n, 4)
    if p.mfma:
        T = {2: (5, 4, 1, 2), 4: (8, 6, 3, 0), 8: (12, 10, 7, 0)}[p.passes]
        if c.mfma:
            if p.w & (c.a | c.b): n = max(n, T[0])
            if p.w & c.c:
                n = max(n, T[3] if (p.w == c.c and p.passes == c.passes) else T[1])
            elif p.w & c.w: n = max(n, T[1])
        elif c.valu or c.vmem or c.ds:
            if p.w & (c.r | c.w): n = max(n, T[0])
            if c.valu and p.c & c.w: n = max(n, T[2])
    if p.salu and "m0" in p.w and c.vmem and getattr(c, "lds", False): n = max(n, 1)
    if p.vmem and getattr(p, "widestore", None):
        if p.widestore & c.w: n = max(n, 2 if c.valu else 1)
    return n
def check(text):
    lines = [l for l in text.split("\n")]
    ins = []; labels = {}
    for l in lines:
        t = l.split(";")[0].strip()
        if not t or t.startswith("."): continue
        if t.endswith(":"): labels[t[:-1]] = len(ins); continue
        ins.append(I(t))
    errs = []
    def scan(seq, start):
        for k in range(start, len(seq)):
            d = 0
            for q in range(k - 1, max(-1, k - 25), -1):
                n = need(seq[q], seq[k])
                if n > d: errs.append(f"need {n} have {d}: [{seq[q].line}] -> [{seq[k].line}]")
                d += seq[q].states
                if d >= 20: break
    seg = []
    for x in ins:
        seg.append(x)
        if x.mn in ("s_branch", "s_endpgm"):
            scan(seg, 0); seg = []
    scan(seg, 0)
    for k, x in enumerate(ins):
        if x.mn.startswith(("s_branch", "s_cbranch")):
            t = labels[x.ops[0]]
            pre = []
            for q in range(k, max(-1, k - 22), -1):
                if q < k and ins[q].mn in ("s_branch", "s_endpgm"): break
                pre.insert(0, ins[q])
            post = []
            for q in range(t, min(len(ins), t + 22)):
                post.append(ins[q])
                if ins[q].mn in ("s_branch", "s_endpgm"): break
            scan(pre + post, len(pre))
    return sorted(set(errs))
if __name__ == "__main__":
    import sys
    for f in sys.argv[1:]:
        t = open(f).read()
        t = t[t.index("_kernel:\n") + 9: t.index(".section .rodata")]
        e = check(t)
        print(f, "hazards:", len(e))
        for x in e: print("  ", x)
```

```python
import sys
from common import *
import hazard

WS_QP = 0x1000
WS_GP = WS_QP + 256 * 1024
WS_OP = WS_GP + 256 * 1024
WS_P2 = WS_OP + 256 * 1024
WS_END = WS_P2 + 5 * 65536
L_Q = 131072
L_FLAG = L_Q + 256
L_ML = L_FLAG + 16
L_P = L_Q + 512
L_OV = L_P + 1024
L_OK = L_OV + 2048
L_END = L_OK + 4096
SPIN = 200000
LOG2E = 0x3fb8aa3b
SCALE = 0x3db504f3

def gen(name, pol="nt", stamps=False, mapping="lin", pf=True):
    a = Asm()
    NST = 32
    def stamp(k):
        if stamps:
            a(f"s_memrealtime s[70:71]\ns_waitcnt lgkmcnt(0)\nv_mov_b32 v166, s70\nv_mov_b32 v167, s71\nv_mov_b32 v165, 0\ns_mov_b64 s[72:73], exec\ns_mov_b64 exec, 1")
            a(f"s_mul_i32 s74, s2, {NST*8}\ns_add_u32 s74, s74, {(256<<20) + 8*k}\nbuffer_store_dwordx2 v[166:167], v165, s[36:39], s74 offen\ns_mov_b64 exec, s[72:73]")
    def sstamp(k):
        if stamps: a(f"s_memrealtime s[{76+2*k}:{77+2*k}]")
    def flush(pairs):
        if stamps:
            a("s_waitcnt lgkmcnt(0)\nv_mov_b32 v165, 0\ns_mov_b64 exec, 1")
            for k, slot in pairs:
                a(f"v_mov_b32 v166, s{76+2*k}\nv_mov_b32 v167, s{77+2*k}\ns_mul_i32 s74, s2, {NST*8}\ns_add_u32 s74, s74, {(256<<20) + 8*slot}\nbuffer_store_dwordx2 v[166:167], v165, s[36:39], s74 offen\ns_waitcnt vmcnt(0)")
    def flushw(k, base):
        if stamps:
            a(f"s_waitcnt lgkmcnt(0)\nv_mov_b32 v165, 0\ns_mov_b64 exec, 1\nv_mov_b32 v166, s{76+2*k}\nv_mov_b32 v167, s{77+2*k}\ns_mul_i32 s74, s2, {NST*8}\ns_lshl_b32 s75, s3, 3\ns_add_u32 s74, s74, s75\ns_add_u32 s74, s74, {(256<<20) + 8*base}\nbuffer_store_dwordx2 v[166:167], v165, s[36:39], s74 offen\ns_waitcnt vmcnt(0)")
    def srd(d, b, n):
        a(f"s_mov_b32 s{d}, s{b}\ns_and_b32 s{d+1}, s{b+1}, 0xffff\ns_mov_b32 s{d+2}, {n}\ns_mov_b32 s{d+3}, 0x20000")
    def selectors(t0):
        a(f"""s_mov_b32 s46, 0xaaaaaaaa
        s_mov_b32 s47, 0xaaaaaaaa
        v_mov_b32 v{t0}, 0x0c0c0100
        v_mov_b32 v{t0+1}, 0x01000c0c
        v_cndmask_b32 v{t0}, v{t0}, v{t0+1}, s[46:47]
        v_mov_b32 v{t0+1}, 0x0c0c0302
        v_mov_b32 v{t0+2}, 0x03020c0c
        v_cndmask_b32 v{t0+1}, v{t0+1}, v{t0+2}, s[46:47]
        v_mov_b32 v{t0+2}, 0x0c0c0c0c
        s_mov_b32 s46, 0x03030303
        s_mov_b32 s47, 0x03030303""")
        for u in range(4):
            a(f"v_cndmask_b32 v{4+2*u}, v{t0+2}, v{t0}, s[46:47]\nv_cndmask_b32 v{5+2*u}, v{t0+2}, v{t0+1}, s[46:47]")
            if u < 3: a("s_lshl_b64 s[46:47], s[46:47], 2")
    def gettag():
        a("s_waitcnt lgkmcnt(0)\ns_add_u32 s32, s32, 1\ns_and_b32 s33, s32, 0xff\ns_mov_b32 s48, 0xffffff00\nv_mov_b32 v12, s33")
    def abuild(dst, srcs, par):
        for u in range(4):
            a(f"v_perm_b32 v{dst+u}, v{srcs[u]}, v{srcs[u]}, v{4+2*u+par}")
    def tagregs(r0, n=4, dst=None):
        dst = r0 if dst is None else dst
        for r in range(n): a(f"v_and_or_b32 v{dst+r}, v{r0+r}, s48, v12")
    def untag_check(src, dst, n, acc, label):
        for r in range(n): a(f"v_xor_b32 v{dst+r}, v12, v{src+r}")
        a(f"v_or_b32 v{acc}, v{dst}, v{dst+1}")
        for r in range(2, n, 2): a(f"v_or3_b32 v{acc}, v{acc}, v{dst+r}, v{dst+r+1}")
        a(f"v_and_b32 v{acc}, 0xff, v{acc}\nv_cmp_ne_u32 vcc, 0, v{acc}\ns_cbranch_vccz {label}_ok")
        a(f"s_sub_u32 s49, s49, 1\ns_cbranch_scc0 {label}\ns_endpgm\n{label}_ok:")
    def dpp(op, d, s0, s1, ctl, rm="0xf"):
        a(f"{op}_dpp v{d}, v{s0}, v{s1} {ctl} row_mask:{rm} bank_mask:0xf")
    def wavereduce(op, v, sdst):
        for ctl in ("row_ror:8", "row_ror:4", "row_ror:2", "row_ror:1"):
            a("s_nop 1"); dpp(op, v, v, v, ctl)
        a("s_nop 1"); dpp(op, v, v, v, "row_bcast:15", "0xa")
        a("s_nop 1"); dpp(op, v, v, v, "row_bcast:31", "0xc")
        a(f"s_nop 0\nv_readlane_b32 s{sdst}, v{v}, 63\ns_nop 1")
    def bfround(d, s):
        a(f"v_cvt_pk_bf16_f32 v{d}, v{s}, v{s}\nv_lshlrev_b32 v{d}, 16, v{d}")

    if stamps: a("s_memrealtime s[76:77]")
    a("s_cmp_ge_u32 s2, 256\ns_cbranch_scc1 L_end")
    a("s_load_dwordx16 s[4:19], s[0:1], 0\ns_load_dwordx8 s[20:27], s[0:1], 64\ns_load_dwordx2 s[28:29], s[0:1], 96")
    a("v_lshrrev_b32 v2, 6, v0\nv_and_b32 v1, 63, v0\nv_readfirstlane_b32 s3, v2\nv_lshrrev_b32 v2, 4, v1\nv_and_b32 v3, 15, v1")
    if mapping == "lin":
        a("s_lshr_b32 s30, s2, 3\ns_and_b32 s31, s2, 7")
    elif mapping == "xcd":
        a("s_and_b32 s30, s2, 7\ns_lshl_b32 s30, s30, 2\ns_lshr_b32 s31, s2, 6\ns_add_u32 s30, s30, s31\ns_bfe_u32 s31, s2, 0x30003")
    a(f"v_mov_b32 v4, 0\nv_mov_b32 v5, 0\nv_mov_b32 v6, 0\nv_mov_b32 v7, 0\nv_mov_b32 v8, {L_FLAG}\nds_write_b128 v8, v[4:7]")
    a(f"s_lshl_b32 s50, s30, 3\ns_add_u32 s50, s50, s31\ns_mov_b32 s49, {SPIN}")
    a("s_waitcnt lgkmcnt(0)")
    a("s_load_dword s32, s[28:29], 0")
    srd(36, 28, 536870912)
    a("s_cmp_ge_u32 s3, 6\ns_cbranch_scc1 L_V\ns_cmp_ge_u32 s3, 2\ns_cbranch_scc1 L_K\ns_cmp_eq_u32 s3, 0\ns_cbranch_scc1 L_W0")
    a("s_cmp_ge_u32 s30, 27\ns_cbranch_scc1 L_R")
    a("""v_mov_b32 v14, s16
    v_mov_b32 v15, s17
    v_mov_b32 v16, s18
    v_mov_b32 v17, s19
    v_cmp_gt_u32 vcc, 8, v3
    v_and_b32 v18, 7, v3
    v_lshlrev_b32 v18, 4, v18
    v_cndmask_b32 v14, v16, v14, vcc
    v_cndmask_b32 v15, v17, v15, vcc
    s_mov_b32 s44, 3456
    s_lshl_b32 s34, s30, 7
    s_branch L_W""")
    a("L_W0:")
    a("""v_mov_b32 v14, s10
    v_mov_b32 v15, s11
    v_lshlrev_b32 v18, 4, v3
    s_mov_b32 s44, 8192
    s_lshl_b32 s34, s30, 8""")
    a("L_W:")
    a("s_setprio 2")
    srd(40, 4, 2560)
    a("""v_lshrrev_b32 v13, 3, v3
    v_mul_u32_u24 v13, 1280, v13
    v_mad_u32_u24 v13, v2, 40, v13
    s_mul_i32 s35, s31, 160
    buffer_load_dwordx4 v[20:23], v13, s[40:43], s35 offen
    buffer_load_dwordx4 v[24:27], v13, s[40:43], s35 offen offset:16
    buffer_load_dwordx2 v[28:29], v13, s[40:43], s35 offen offset:32
    s_mul_i32 s35, s31, 80
    s_mul_i32 s35, s35, s44
    s_add_u32 s34, s34, s35
    s_mul_i32 s35, s44, 20
    v_mul_u32_u24 v19, s35, v2
    v_add3_u32 v18, v18, v19, s34
    v_mov_b32 v19, 0
    s_mov_b32 s45, 0
    v_lshl_add_u64 v[14:15], v[18:19], 0, v[14:15]""")
    for t in range(20):
        a(f"global_load_dwordx4 v[{32+4*t}:{35+4*t}], v[14:15], off {pol}")
        if t < 19: a("v_lshl_add_u64 v[14:15], v[14:15], 0, s[44:45]")
    a("s_barrier")
    selectors(16)
    gettag()
    a("s_waitcnt vmcnt(20)")
    for t in range(20):
        A = 112 + 4 * (t & 1)
        abuild(A, [20 + t // 2] * 4, t & 1)
        a(f"s_waitcnt vmcnt({19-t})\ns_nop 0")
        a(f"v_mfma_f32_16x16x32_bf16 v[120:123], v[{A}:{A+3}], v[{32+4*t}:{35+4*t}], {'0' if t == 0 else 'v[120:123]'}")
    a(f"v_lshlrev_b32 v13, 4, v1\ns_lshl_b32 s34, s3, 8\ns_add_u32 s34, s34, s50\ns_lshl_b32 s34, s34, 10\ns_add_u32 s34, s34, {WS_QP}\ns_nop 3")
    tagregs(120)
    a("buffer_store_dwordx4 v[120:123], v13, s[36:39], s34 offen sc1")
    a("s_cmp_lg_u32 s3, 0\ns_cbranch_scc1 L_end")
    sstamp(1)
    a(f"""v_lshrrev_b32 v14, 5, v1
    v_and_b32 v15, 31, v1
    v_lshlrev_b32 v13, 10, v14
    v_lshl_add_u32 v13, v15, 4, v13
    s_lshr_b32 s35, s31, 2
    s_lshl_b32 s35, s35, 9
    s_lshl_b32 s34, s30, 13
    s_add_u32 s34, s34, s35
    s_add_u32 s34, s34, {WS_QP}
    s_add_u32 s35, s34, 4096
    v_and_b32 v15, 1, v2
    v_lshlrev_b32 v15, 3, v15
    v_lshl_add_u32 v15, v3, 4, v15
    v_lshl_add_u32 v15, v14, 2, v15
    v_add_u32 v15, {L_Q}, v15""")
    a("L_qpoll:")
    a("""buffer_load_dwordx4 v[32:35], v13, s[36:39], s34 offen sc1
    buffer_load_dwordx4 v[36:39], v13, s[36:39], s34 offen offset:2048 sc1
    buffer_load_dwordx4 v[40:43], v13, s[36:39], s35 offen sc1
    buffer_load_dwordx4 v[44:47], v13, s[36:39], s35 offen offset:2048 sc1
    s_waitcnt vmcnt(0)""")
    untag_check(32, 32, 16, 48, "L_qpoll")
    for r in range(4):
        a(f"v_add_f32 v{32+r}, v{32+r}, v{36+r}\nv_add_f32 v{40+r}, v{40+r}, v{44+r}")
    for r in range(4): a(f"v_add_f32 v{32+r}, v{32+r}, v{40+r}")
    a(f"""s_nop 1
    v_permlane32_swap_b32 v32, v34
    v_permlane32_swap_b32 v33, v35
    v_add_f32 v32, v32, v34
    v_add_f32 v33, v33, v35
    v_cvt_pk_bf16_f32 v32, v32, v33
    v_mov_b32 v33, 1
    v_mov_b32 v34, {L_FLAG}
    ds_write_b32 v15, v32
    ds_write_b32 v34, v33""")
    sstamp(2)
    flush([(0, 0), (1, 1), (2, 2)])
    a("s_endpgm")

    a("L_R:")
    srd(40, 4, 2560)
    srd(44, 22, 1280)
    a("""v_mul_u32_u24 v13, 20, v1
    s_lshr_b32 s34, s31, 2
    s_mul_i32 s34, s34, 1280
    buffer_load_dwordx4 v[16:19], v13, s[40:43], s34 offen
    buffer_load_dword v20, v13, s[40:43], s34 offen offset:16
    buffer_load_dwordx4 v[24:27], v13, s[44:47], 0 offen
    buffer_load_dword v28, v13, s[44:47], 0 offen offset:16
    s_barrier""")
    gettag()
    a("v_mov_b32 v30, 0\ns_waitcnt vmcnt(0)")
    for k in range(5):
        a(f"""v_lshlrev_b32 v32, 16, v{16+k}
        v_and_b32 v33, 0xffff0000, v{16+k}
        v_lshlrev_b32 v34, 16, v{24+k}
        v_and_b32 v35, 0xffff0000, v{24+k}
        v_mul_f32 v32, v32, v34
        v_mul_f32 v33, v33, v35
        v_cvt_pk_bf16_f32 v32, v32, v33
        v_and_b32 v33, 0xffff0000, v32
        v_lshlrev_b32 v32, 16, v32
        v_add_f32 v30, v30, v33
        v_add_f32 v30, v30, v32""")
    wavereduce("v_add_f32", 30, 51)
    a("v_mov_b32 v30, s51")
    bfround(30, 30)
    a(f"v_mul_f32 v30, {LOG2E | 0x80000000:#x}, v30\nv_exp_f32 v30, v30\ns_nop 0\nv_add_f32 v30, 1.0, v30\nv_rcp_f32 v30, v30\ns_nop 0")
    bfround(30, 30)
    a("v_sub_f32 v31, 1.0, v30")
    bfround(31, 31)
    srd(40, 24, 2560)
    a(f"""v_lshrrev_b32 v13, 3, v1
    v_and_b32 v14, 7, v1
    v_lshlrev_b32 v13, 10, v13
    v_lshl_add_u32 v13, v14, 4, v13
    s_sub_u32 s52, s30, 27
    s_lshl_b32 s53, s52, 16
    s_lshl_b32 s54, s31, 7
    s_add_u32 s53, s53, s54
    s_add_u32 s53, s53, {WS_P2}
    s_add_u32 s54, s53, 8192
    s_add_u32 s55, s53, 16384
    s_add_u32 s56, s53, 24576
    s_add_u32 s57, s53, 32768
    s_add_u32 s58, s53, 40960
    v_lshl_add_u32 v14, v14, 2, v2
    v_lshlrev_b32 v14, 1, v14
    s_lshl_b32 s52, s52, 8
    s_add_u32 s34, s34, s52
    s_and_b32 s52, s31, 3
    s_lshl_b32 s52, s52, 6
    s_add_u32 s34, s34, s52
    v_mov_b32 v36, v12
    v_mov_b32 v37, v12
    v_mov_b32 v38, v12
    v_mov_b32 v39, v12
    s_barrier""")
    def xreduce(r0):
        a(f"""s_nop 1
        v_permlane32_swap_b32 v{r0}, v{r0+2}
        v_permlane32_swap_b32 v{r0+1}, v{r0+3}
        v_add_f32 v{r0}, v{r0}, v{r0+2}
        v_add_f32 v{r0+1}, v{r0+1}, v{r0+3}
        s_nop 1
        v_permlane16_swap_b32 v{r0}, v{r0+1}
        v_add_f32 v{r0}, v{r0}, v{r0+1}
        s_nop 1""")
        dpp("v_add_f32", r0, r0, r0, "row_ror:8")
    a("L_dpoll:")
    a("""buffer_load_dwordx4 v[32:35], v13, s[36:39], s57 offen sc1
    s_mov_b32 exec_hi, 0xffff
    buffer_load_dwordx4 v[36:39], v13, s[36:39], s58 offen sc1
    s_mov_b32 exec_hi, -1
    s_waitcnt vmcnt(0)""")
    untag_check(32, 40, 8, 48, "L_dpoll")
    for r in range(4): a(f"v_add_f32 v{40+r}, v{40+r}, v{44+r}")
    xreduce(40)
    bfround(40, 40)
    a("v_mul_f32 v31, v31, v40")
    bfround(31, 31)
    sstamp(1)
    a("L_apoll:")
    for t in range(4): a(f"buffer_load_dwordx4 v[{32+4*t}:{35+4*t}], v13, s[36:39], s{53+t} offen sc1")
    a("s_waitcnt vmcnt(0)")
    untag_check(32, 32, 16, 48, "L_apoll")
    for r in range(4):
        a(f"v_add_f32 v{32+r}, v{32+r}, v{36+r}\nv_add_f32 v{40+r}, v{40+r}, v{44+r}")
    for r in range(4): a(f"v_add_f32 v{32+r}, v{32+r}, v{40+r}")
    xreduce(32)
    bfround(32, 32)
    a("v_mul_f32 v32, v30, v32")
    bfround(32, 32)
    a("v_add_f32 v32, v32, v31\nv_cvt_pk_bf16_f32 v32, v32, v32\nbuffer_store_short v32, v14, s[40:43], s34 offen")
    sstamp(2)
    a("s_cmp_lg_u32 s50, 216\ns_cbranch_scc1 L_Rend")
    a("v_mov_b32 v33, s32\nv_mov_b32 v34, 0\ns_mov_b64 exec, 1\nbuffer_store_dword v33, v34, s[36:39], 0 offen")
    a("L_Rend:")
    flush([(1, 14), (2, 15)])
    a("s_endpgm")

    def chunkbase(wavebase):
        a(f"""s_sub_u32 s34, s3, {wavebase}
        s_lshr_b32 s35, s31, 2
        s_lshl_b32 s35, s35, 5
        s_add_u32 s35, s35, s30
        s_lshl_b32 s35, s35, 21
        s_and_b32 s51, s31, 3
        s_lshl_b32 s51, s51, 17
        s_add_u32 s35, s35, s51
        s_lshl_b32 s51, s34, 12
        s_add_u32 s35, s35, s51
        s_add_u32 s35, s35, 1572864""")
    a("L_K:")
    a("s_setprio 1")
    srd(40, 6, 134217728)
    chunkbase(2)
    a("s_lshl_b32 s51, s34, 15\nv_lshlrev_b32 v21, 8, v3\nv_add_u32 v21, s51, v21\ns_mov_b32 m0, s51")
    for t in range(4):
        a(f"v_add_u32 v22, {4*t}, v2\nv_xor_b32 v22, v22, v3\nv_lshlrev_b32 v22, 4, v22\nv_lshl_add_u32 v{13+t}, v2, 8, v22\nv_add_u32 v{17+t}, v21, v22")
    a("s_mov_b32 s52, 8\ns_barrier")
    a("L_kload:")
    for t in range(4): a(f"buffer_load_dwordx4 v{13+t}, s[40:43], s35 offen offset:{1024*t} {pol} lds")
    a("s_add_u32 m0, m0, 4096\ns_add_u32 s35, s35, 16384\ns_sub_u32 s52, s52, 1\ns_cmp_lg_u32 s52, 0\ns_cbranch_scc1 L_kload")
    sstamp(1)
    selectors(22)
    gettag()
    a(f"v_mov_b32 v22, {L_FLAG}\nv_lshlrev_b32 v23, 4, v2\nv_add_u32 v23, {L_Q}, v23")
    a("L_qwait:")
    a("ds_read_b32 v24, v22\ns_waitcnt lgkmcnt(0)\nv_cmp_ne_u32 vcc, 0, v24\ns_cbranch_vccnz L_qok\ns_sleep 2\ns_sub_u32 s49, s49, 1\ns_cbranch_scc0 L_qwait\ns_endpgm")
    a("L_qok:")
    for t in range(4): a(f"ds_read_b128 v[{32+4*t}:{35+4*t}], v23 offset:{64*t}")
    a("s_mov_b32 s52, 0x00010001\ns_mov_b32 s53, 0x00010001\ns_waitcnt vmcnt(0)")
    sstamp(2)
    a("L_qk:")
    for t in range(4): a(f"ds_read_b128 v[{48+4*t}:{51+4*t}], v{17+t}")
    for t in range(4): a(f"v_add_u32 v{17+t}, 4096, v{17+t}")
    a("s_lshl_b64 s[54:55], s[52:53], 1")
    for t in range(4):
        a(f"s_waitcnt lgkmcnt({3-t})\nv_mfma_f32_16x16x32_bf16 v[64:67], v[{48+4*t}:{51+4*t}], v[{32+4*t}:{35+4*t}], {'0' if t == 0 else 'v[64:67]'}")
    a("""s_nop 7
    v_cndmask_b32 v68, v68, v64, s[52:53]
    v_cndmask_b32 v69, v69, v65, s[52:53]
    v_cndmask_b32 v68, v68, v66, s[54:55]
    v_cndmask_b32 v69, v69, v67, s[54:55]
    s_lshl_b64 s[52:53], s[52:53], 2
    s_and_b32 s54, s52, 0xffff
    s_cbranch_scc1 L_qk""")
    a(f"""v_cvt_pk_bf16_f32 v68, v68, v69
    v_and_b32 v69, 0xffff0000, v68
    v_lshlrev_b32 v68, 16, v68
    v_mul_f32 v68, {SCALE:#x}, v68
    v_mul_f32 v69, {SCALE:#x}, v69
    v_cvt_pk_bf16_f32 v68, v68, v69
    v_and_b32 v69, 0xffff0000, v68
    v_lshlrev_b32 v68, 16, v68
    v_max_f32 v70, v68, v69""")
    wavereduce("v_max_f32", 70, 52)
    a(f"""v_subrev_f32 v68, s52, v68
    v_subrev_f32 v69, s52, v69
    v_mul_f32 v68, {LOG2E:#x}, v68
    v_mul_f32 v69, {LOG2E:#x}, v69
    v_exp_f32 v68, v68
    v_exp_f32 v69, v69
    s_lshl_b32 s54, s34, 8
    s_add_u32 s54, s54, {L_P}
    v_lshl_add_u32 v22, v1, 2, s54
    v_cvt_pk_bf16_f32 v71, v68, v69
    v_add_f32 v70, v68, v69
    ds_write_b32 v22, v71""")
    wavereduce("v_add_f32", 70, 53)
    a(f"""v_mov_b32 v68, s52
    v_mov_b32 v69, s53
    s_lshl_b32 s54, s34, 3
    s_add_u32 s54, s54, {L_ML}
    v_mov_b32 v22, s54
    ds_write_b64 v22, v[68:69]""")
    sstamp(3)
    a(f"""v_mul_u32_u24 v13, {8*1280}, v2
    v_lshl_add_u32 v13, v3, 4, v13
    v_lshrrev_b32 v14, 3, v3
    s_cmp_ge_u32 s31, 5
    s_cbranch_scc1 L_wdsetup""")
    srd(40, 12, 5242880)
    a(f"""s_mov_b32 s56, 0
    s_mov_b32 s57, s30
    s_mov_b32 s58, s31
    s_mov_b32 s59, s30
    v_and_b32 v15, 3, v3
    v_lshl_add_u32 v15, v14, 2, v15
    v_lshlrev_b32 v15, 10, v15
    v_bfe_u32 v16, v3, 2, 1
    v_lshlrev_b32 v16, 4, v16
    v_lshl_add_u32 v16, v2, 5, v16
    s_lshl_b32 s54, s34, 7
    v_add3_u32 v16, v16, v15, s54
    s_lshl_b32 s60, s30, 13
    s_add_u32 s60, s60, {WS_OP}
    s_branch L_mid""")
    a("L_wdsetup:")
    srd(40, 20, 2211840)
    a(f"""s_mul_i32 s54, s30, 3
    s_add_u32 s54, s54, s31
    s_sub_u32 s54, s54, 5
    s_mov_b32 s56, 3
    s_cmp_ge_u32 s54, 70
    s_cbranch_scc1 L_mid
    s_mul_i32 s57, s54, 0x3334
    s_lshr_b32 s57, s57, 16
    s_mul_i32 s58, s57, 5
    s_sub_u32 s58, s54, s58
    s_add_u32 s59, s57, 32
    s_lshl_b32 s54, s57, 1
    s_lshr_b32 s55, s34, 1
    s_add_u32 s54, s54, s55
    s_mov_b32 s56, 2
    s_cmp_ge_u32 s54, 27
    s_cbranch_scc1 L_mid
    s_mov_b32 s56, 1
    s_lshl_b32 s54, s54, 13
    s_and_b32 s55, s34, 1
    s_lshl_b32 s55, s55, 6
    s_add_u32 s54, s54, s55
    s_add_u32 s54, s54, {WS_GP}
    v_and_b32 v15, 7, v3
    v_lshlrev_b32 v15, 10, v15
    v_lshl_add_u32 v15, v14, 9, v15
    v_lshl_add_u32 v15, v2, 4, v15""")
    a("L_gpoll:")
    for k, off in enumerate((0, 256, 128, 384)):
        a(f"buffer_load_dwordx4 v[{32+4*k}:{35+4*k}], v15, s[36:39], s54 offen offset:{off} sc1")
    a("s_waitcnt vmcnt(0)")
    untag_check(32, 32, 16, 48, "L_gpoll")
    for ctl in ("quad_perm:[1,0,3,2]", "quad_perm:[2,3,0,1]", "row_half_mirror"):
        for r in range(16): dpp("v_add_f32", 32 + r, 32 + r, 32 + r, ctl)
    for k in range(4):
        g0, g1, u0, u1 = 32 + 2 * k, 33 + 2 * k, 40 + 2 * k, 41 + 2 * k
        a(f"""v_cvt_pk_bf16_f32 v{g0}, v{g0}, v{g1}
        v_cvt_pk_bf16_f32 v{u0}, v{u0}, v{u1}
        v_and_b32 v{g1}, 0xffff0000, v{g0}
        v_lshlrev_b32 v{g0}, 16, v{g0}
        v_and_b32 v{u1}, 0xffff0000, v{u0}
        v_lshlrev_b32 v{u0}, 16, v{u0}""")
        for g in (g0, g1):
            a(f"""v_mul_f32 v48, v{g}, v{g}
            v_mul_f32 v48, 0x3d372713, v48
            v_fma_f32 v48, v48, v{g}, v{g}
            v_mul_f32 v48, 0xc0135761, v48
            v_exp_f32 v48, v48
            s_nop 0
            v_add_f32 v48, 1.0, v48
            v_rcp_f32 v48, v48
            s_nop 0
            v_mul_f32 v{g}, v{g}, v48""")
        a(f"""v_cvt_pk_bf16_f32 v{g0}, v{g0}, v{g1}
        v_and_b32 v{g1}, 0xffff0000, v{g0}
        v_lshlrev_b32 v{g0}, 16, v{g0}
        v_mul_f32 v{g0}, v{g0}, v{u0}
        v_mul_f32 v{g1}, v{g1}, v{u1}
        v_cvt_pk_bf16_f32 v{24+k}, v{g0}, v{g1}""")
    a("""s_mov_b32 s54, 0xf0f0f0f0
    s_mov_b32 s55, 0xf0f0f0f0
    v_mov_b32 v28, v24
    v_mov_b32 v29, v25
    v_cndmask_b32 v24, v24, v26, s[54:55]
    v_cndmask_b32 v25, v25, v27, s[54:55]
    v_cndmask_b32 v26, v26, v28, s[54:55]
    v_cndmask_b32 v27, v27, v29, s[54:55]""")
    a("L_mid:")
    sstamp(7)
    a("s_waitcnt lgkmcnt(0)\ns_barrier")
    sstamp(4)
    a("s_cmp_eq_u32 s56, 3\ns_cbranch_scc1 L_Kend")
    a(f"""s_lshl_b32 s54, s34, 10
    s_add_u32 s54, s54, {L_OK}
    v_lshl_add_u32 v18, v1, 4, s54
    v_lshlrev_b32 v19, 4, v1
    v_add_u32 v19, {L_OK}, v19
    v_mov_b32 v20, {L_FLAG}
    v_mov_b32 v21, 1
    v_mov_b32 v64, 0
    v_mov_b32 v65, 0
    v_mov_b32 v66, 0
    v_mov_b32 v67, 0
    s_cmp_eq_u32 s56, 2
    s_cbranch_scc1 L_p2red
    s_lshl_b32 s54, s57, 2
    s_add_u32 s54, s54, s34
    s_mul_i32 s54, s54, {32*1280}
    s_lshl_b32 s55, s58, 8
    s_add_u32 s54, s54, s55
    s_add_u32 s55, s54, {4*1280}""")
    for t in range(8):
        a(f"buffer_load_dwordx4 v[{32+4*t}:{35+4*t}], v13, s[40:43], s{54 + t//4} offen offset:{1280*(t%4)} {pol}")
    a("s_cmp_eq_u32 s56, 1\ns_cbranch_scc1 L_p2mm")
    a("L_opoll:")
    a("buffer_load_dwordx4 v[72:75], v16, s[36:39], s60 offen sc1\nbuffer_load_dwordx4 v[76:79], v15, s[36:39], s60 offen offset:512 sc1\ns_waitcnt vmcnt(0)")
    untag_check(72, 72, 8, 80, "L_opoll")
    sstamp(5)
    dpp("v_max_f32", 78, 76, 76, "quad_perm:[1,0,3,2]")
    a("s_nop 1"); dpp("v_max_f32", 78, 78, 78, "quad_perm:[2,3,0,1]")
    a(f"v_sub_f32 v76, v76, v78\nv_mul_f32 v76, {LOG2E:#x}, v76\nv_exp_f32 v76, v76\ns_nop 0\nv_mul_f32 v77, v76, v77")
    for r in range(4): a(f"v_mul_f32 v{72+r}, v76, v{72+r}")
    for ctl in ("quad_perm:[1,0,3,2]", "quad_perm:[2,3,0,1]"):
        dpp("v_add_f32", 77, 77, 77, ctl)
        for r in range(4): dpp("v_add_f32", 72 + r, 72 + r, 72 + r, ctl)
    a("v_rcp_f32 v77, v77\ns_nop 0")
    for r in range(4): a(f"v_mul_f32 v{72+r}, v77, v{72+r}")
    a("v_cvt_pk_bf16_f32 v24, v72, v73\nv_cvt_pk_bf16_f32 v25, v74, v75\ns_nop 0")
    a("v_mov_b32_dpp v26, v24 row_half_mirror row_mask:0xf bank_mask:0xf\nv_mov_b32_dpp v27, v25 row_half_mirror row_mask:0xf bank_mask:0xf")
    a("L_p2mm:")
    for t in range(8):
        A = 68 + 4 * (t & 1) if False else 84 + 4 * (t & 1)
        k = (t >> 1) & 1
        own, oth = 24 + k, 26 + k
        srcs = [own, own, oth, oth] if t < 4 else [oth, oth, own, own]
        abuild(A, srcs, t & 1)
        a(f"s_waitcnt vmcnt({7-t})\ns_nop 0")
        a(f"v_mfma_f32_16x16x32_bf16 v[64:67], v[{A}:{A+3}], v[{32+4*t}:{35+4*t}], v[64:67]")
    a("s_nop 7")
    a("L_p2red:")
    a("""ds_write_b128 v18, v[64:67]
    s_mov_b64 exec, 1
    ds_add_rtn_u32 v21, v20, v21 offset:8
    s_mov_b64 exec, -1""")
    for k in range(4): a(f"ds_read_b128 v[{32+4*k}:{35+4*k}], v19 offset:{1024*k}")
    a(f"""v_lshrrev_b32 v14, 5, v1
    v_lshlrev_b32 v14, 9, v14
    v_lshl_add_u32 v14, v3, 5, v14
    v_and_b32 v15, 1, v2
    v_lshl_add_u32 v14, v15, 4, v14
    s_lshl_b32 s54, s58, 6
    s_add_u32 s54, s54, s59
    s_lshl_b32 s54, s54, 10
    s_add_u32 s54, s54, {WS_P2}
    s_waitcnt lgkmcnt(0)
    v_readfirstlane_b32 s55, v21
    s_cmp_lg_u32 s55, 3
    s_cbranch_scc1 L_Kend""")
    for r in range(4):
        a(f"v_add_f32 v{32+r}, v{32+r}, v{36+r}\nv_add_f32 v{40+r}, v{40+r}, v{44+r}")
    for r in range(4): a(f"v_add_f32 v{32+r}, v{32+r}, v{40+r}")
    tagregs(32)
    a("buffer_store_dwordx4 v[32:35], v14, s[36:39], s54 offen sc1")
    if stamps:
        sstamp(6)
        flush([(6, 13)])
    a("L_Kend:")
    flushw(7, 14)
    if stamps:
        a("s_cmp_lg_u32 s34, 0\ns_cbranch_scc1 L_end")
        flush([(1, 3), (2, 4), (3, 5), (4, 6)])
        a("s_cmp_lg_u32 s56, 0\ns_cbranch_scc1 L_end")
        flush([(5, 12)])
    a("s_endpgm")

    a("L_V:")
    srd(40, 8, 134217728)
    chunkbase(6)
    a("v_lshlrev_b32 v13, 10, v2\nv_lshl_add_u32 v13, v3, 4, v13")
    if pf:
        a("s_getpc_b64 s[52:53]\nL_pc:\ns_sub_u32 s52, s52, L_pc-" + KN + "_kernel\ns_subb_u32 s53, s53, 0\nv_lshlrev_b32 v14, 6, v0\nv_subrev_u32 v14, 384*64, v14\nglobal_load_dword v14, v14, s[52:53]")
    a("s_barrier")
    VB = 36
    for i in range(32):
        a(f"buffer_load_dwordx4 v[{VB+4*i}:{VB+3+4*i}], v13, s[40:43], s35 offen offset:{256*(i%4)} {pol}")
        if i % 4 == 3 and i < 31: a("s_add_u32 s35, s35, 16384")
    sstamp(1)
    a("s_waitcnt vmcnt(32)")
    selectors(16)
    gettag()
    a(f"""s_lshl_b32 s54, s34, 8
    s_add_u32 s54, s54, {L_P}
    v_lshl_add_u32 v13, v2, 6, s54
    v_mov_b32 v14, {L_FLAG}
    s_lshl_b32 s54, s34, 3
    v_add_u32 v15, s54, v14""")
    sstamp(7)
    a(f"""s_barrier
    ds_read_b128 v[16:19], v13
    ds_read_b128 v[20:23], v13 offset:16
    ds_read_b128 v[24:27], v14 offset:16
    ds_read_b128 v[28:31], v14 offset:32
    ds_read_b32 v15, v15 offset:16
    s_waitcnt lgkmcnt(0)
    v_max_f32 v0, v24, v26
    v_max3_f32 v0, v0, v28, v30""")
    for r in (24, 26, 28, 30, 15):
        a(f"v_sub_f32 v{r}, v{r}, v0\nv_mul_f32 v{r}, {LOG2E:#x}, v{r}\nv_exp_f32 v{r}, v{r}")
    a("""v_mul_f32 v164, v24, v25
    v_fmac_f32 v164, v26, v27
    v_fmac_f32 v164, v28, v29
    v_fmac_f32 v164, v30, v31""")
    for i in range(32):
        A = 24 + 4 * (i & 1)
        if i < 16: p = 16 + i // 2
        else: p = VB + (i - 16) // 2
        if i == 8: a(f"ds_read_b128 v[{VB}:{VB+3}], v13 offset:32\nds_read_b128 v[{VB+4}:{VB+7}], v13 offset:48")
        if i == 16: a("s_waitcnt lgkmcnt(0)")
        abuild(A, [p] * 4, i & 1)
        a(f"s_waitcnt vmcnt({31-i})\ns_nop 0")
        a(f"v_mfma_f32_16x16x32_bf16 v[32:35], v[{A}:{A+3}], v[{VB+4*i}:{VB+3+4*i}], {'0' if i == 0 else 'v[32:35]'}")
        if i == 20:
            a(f"""v_and_b32 v16, 31, v1
            v_lshlrev_b32 v16, 4, v16
            v_add_u32 v16, {L_OV}, v16
            s_lshl_b32 s54, s34, 9
            v_add_u32 v17, s54, v16
            v_mov_b32 v18, 1
            v_and_b32 v19, 1, v2
            v_lshlrev_b32 v19, 4, v19
            v_lshl_add_u32 v19, v3, 5, v19
            v_lshrrev_b32 v20, 5, v1
            v_lshl_add_u32 v19, v20, 9, v19
            v_mov_b32 v60, v0
            v_mov_b32 v61, v164
            v_mov_b32 v62, v0
            v_mov_b32 v63, v164
            s_lshl_b32 s55, s50, 10
            s_add_u32 s55, s55, {WS_OP}""")
    sstamp(2)
    a("s_nop 7")
    for r in range(4): a(f"v_mul_f32 v{32+r}, v15, v{32+r}")
    a("""s_mov_b32 exec_hi, 0
    ds_write_b128 v17, v[32:35]
    s_mov_b32 exec_lo, 1
    ds_add_rtn_u32 v18, v14, v18 offset:4
    s_mov_b32 exec_lo, -1""")
    for k in range(4): a(f"ds_read_b128 v[{44+4*k}:{47+4*k}], v16 offset:{512*k}")
    a("""s_waitcnt lgkmcnt(0)
    v_readfirstlane_b32 s54, v18
    s_cmp_lg_u32 s54, 3
    s_cbranch_scc1 L_Vend""")
    for r in range(4):
        a(f"v_add_f32 v{44+r}, v{44+r}, v{48+r}\nv_add_f32 v{52+r}, v{52+r}, v{56+r}")
    for r in range(4): a(f"v_add_f32 v{60+r}, v{44+r}, v{52+r}")
    a("s_mov_b32 exec_hi, 1")
    tagregs(60)
    a("buffer_store_dwordx4 v[60:63], v19, s[36:39], s55 offen sc1")
    if stamps:
        sstamp(3)
        flush([(3, 11)])
    a("L_Vend:")
    flushw(7, 14)
    flushw(1, 18)
    flushw(2, 22)
    if stamps:
        a("s_cmp_lg_u32 s34, 0\ns_cbranch_scc1 L_end")
        flush([(1, 8), (2, 9)])
    a("L_end:\ns_endpgm")
    if pf: a(".fill 2048, 4, 0xbf800000")
    body = a.text()
    errs = hazard.check(body)
    for e in errs: print("HAZARD", name, e)
    open(name, "w").write(header(256, 640, L_END) + body + footer(168, 96))
if __name__ == "__main__":
    gen("m1.s"); gen("m1_st.s", stamps=True); gen("m1_def.s", pol="")
```

```python
import sys
from common import *
import hazard

WS_HI = 0x400
WS_QP = 0x1000
WS_GP = WS_QP + 256 * 1024
WS_ML = WS_GP + 256 * 1024
WS_HP = WS_ML + 256 * 16
WS_P2 = WS_HP + 256 * 64
L_Q = 131072
L_FLAG = L_Q + 256
L_ML = L_FLAG + 64
L_P = L_Q + 512
L_OV = L_P + 1024
L_OK = L_OV + 2048
L_END = L_OK + 8192
SPIN = 200000
LOG2E = 0x3fb8aa3b
SCALE = 0x3db504f3

def mapcode(MAP, h, x, hl, t):
    if MAP == 0: return f"s_lshl2_add_u32 s{h}, s{x}, s{hl}"
    if MAP == 1: return f"s_lshl3_add_u32 s{h}, s{hl}, s{x}"
    if MAP == 2:
        return f"s_mul_i32 s{t}, s{hl}, 9\ns_and_b32 s{t}, s{t}, 17\ns_lshl1_add_u32 s{h}, s{x}, s{t}"
    if MAP == 3:
        return f"s_lshl_b32 s{t}, s{hl}, 2\ns_lshr_b32 s{t}, 0x6530, s{t}\ns_and_b32 s{t}, s{t}, 7\ns_xor_b32 s{t}, s{t}, s{x}\ns_lshl3_add_u32 s{h}, s{hl}, s{t}"
    if MAP == 4:
        return f"s_lshl_b32 s{t}, s{hl}, 2\ns_lshr_b32 s{t}, 0x6530, s{t}\ns_and_b32 s{t}, s{t}, 7\ns_xor_b32 s{t}, s{t}, s{x}\ns_lshl2_add_u32 s{h}, s{t}, s{hl}"
    if MAP == 5:
        return f"s_mul_i32 s{t}, s{hl}, 5\ns_and_b32 s{t}, s{t}, 9\ns_and_b32 s{h}, s{x}, 4\ns_add_u32 s{h}, s{h}, s{x}\ns_lshl1_add_u32 s{h}, s{h}, s{t}"
    if MAP == 6:
        return f"s_lshl1_add_u32 s{t}, s{hl}, s{x}\ns_and_b32 s{t}, s{t}, 7\ns_lshl2_add_u32 s{h}, s{t}, s{hl}"
    if MAP == 7:
        return f"s_mul_i32 s{t}, s{hl}, 10\ns_and_b32 s{t}, s{t}, 18\ns_and_b32 s{h}, s{x}, 6\ns_add_u32 s{h}, s{h}, s{x}\ns_add_u32 s{h}, s{h}, s{t}"
def gen(name, pol="nt", stamps=False, W=6, W0=6, NP=20, PVRATE=3, P2D=4, pf=1, MLG=10, local=1, OPW=2, LPRIO=1, QG=1, NW=58,
        E=4, ET=9, EB=1, RX=0, GX=0, PD=2, AMP=0, WF=0, WFN=64, WR=0, VP=1, MAP=2, TX=0, ORD=0, MASK=0, PSP=0, RM=1, DM=0, DD=2, SPL=0, AM=1, PT=1, P2W=None, OPD=1, HM=2, DBG=0, WB=0):
    WS_P2 = globals()['WS_P2'] if HM is None else 0x100000 + (HM & 1) * 8192
    WS_RC = 0x1c0000; WS_CH = 0x200
    assert HM != 2 or P2W is None
    a = Asm()
    def sstamp(k):
        if stamps: a(f"s_memrealtime s[{76+2*k}:{77+2*k}]")
    def flushall():
        if stamps:
            a("L_flush:\ns_sleep 4\ns_memrealtime s[72:73]\ns_waitcnt lgkmcnt(0)\ns_sub_u32 s72, s72, s76\ns_cmp_lt_u32 s72, 2500\ns_cbranch_scc1 L_flush")
            a(f"v_mov_b32 v253, 0\ns_mov_b64 exec, 1\ns_lshl_b32 s74, s2, 3\ns_xor_b32 s75, s3, 4\ns_add_u32 s74, s74, s75\ns_mul_i32 s74, s74, 80\ns_add_u32 s74, s74, {256<<20}")
            for k in range(10):
                a(f"v_mov_b32 v254, s{76+2*k}\nv_mov_b32 v255, s{77+2*k}\nbuffer_store_dwordx2 v[254:255], v253, s[36:39], s74 offen offset:{8*k}\ns_nop 1")
    END = "L_flush" if stamps else "L_end"
    def amp_pub():
        if AMP:
            a("""s_cmp_ge_u32 s2, 8
            s_cbranch_scc1 L_amp1
            s_cmp_lg_u32 s3, 0
            s_cbranch_scc1 L_amp1
            s_load_dwordx2 s[70:71], s[0:1], 88
            s_waitcnt lgkmcnt(0)
            v_mov_b32 v20, s76
            s_lshl_b32 s72, s2, 2
            v_mov_b32 v21, s72
            global_store_dword v21, v20, s[70:71] sc1
L_amp1:""")
    def amp_spin():
        if AMP:
            a("s_memrealtime s[78:79]\ns_load_dwordx2 s[70:71], s[0:1], 88\ns_sleep 127\ns_waitcnt lgkmcnt(0)\ns_load_dwordx8 s[80:87], s[70:71], 0 glc\ns_waitcnt lgkmcnt(0)")
            for i in range(8): a(f"s_sub_u32 s{80+i}, s{80+i}, s76")
            a("s_mov_b32 s88, s80")
            for i in range(1, 8): a(f"s_min_i32 s88, s88, s{80+i}")
            a(f"s_sub_u32 s70, s78, s76\ns_sub_u32 s70, s70, s88\ns_mul_i32 s70, s70, {AMP}\ns_add_u32 s70, s70, s88\ns_min_u32 s70, s70, 100000")
            a("L_ampw:\ns_sleep 1\ns_memrealtime s[72:73]\ns_waitcnt lgkmcnt(0)\ns_sub_u32 s72, s72, s76\ns_cmp_lt_u32 s72, s70\ns_cbranch_scc1 L_ampw")
    def srd(d, b, n):
        a(f"s_mov_b32 s{d}, s{b}\ns_mov_b32 s{d+1}, s{b+1}\ns_mov_b32 s{d+2}, {n}\ns_mov_b32 s{d+3}, 0x20000")
    def selectors(t0):
        a(f"""s_mov_b32 s62, 0xaaaaaaaa
        s_mov_b32 s63, 0xaaaaaaaa
        v_mov_b32 v{t0}, 0x0c0c0100
        v_mov_b32 v{t0+1}, 0x01000c0c
        v_cndmask_b32 v{t0}, v{t0}, v{t0+1}, s[62:63]
        v_mov_b32 v{t0+1}, 0x0c0c0302
        v_mov_b32 v{t0+2}, 0x03020c0c
        v_cndmask_b32 v{t0+1}, v{t0+1}, v{t0+2}, s[62:63]
        v_mov_b32 v{t0+2}, 0x0c0c0c0c
        s_mov_b32 s62, 0x03030303
        s_mov_b32 s63, 0x03030303""")
        for u in range(4):
            a(f"v_cndmask_b32 v{4+2*u}, v{t0+2}, v{t0}, s[62:63]\nv_cndmask_b32 v{5+2*u}, v{t0+2}, v{t0+1}, s[62:63]")
            if u < 3: a("s_lshl_b64 s[62:63], s[62:63], 2")
    def gettag():
        a("s_waitcnt lgkmcnt(0)\ns_add_u32 s32, s32, 1\ns_and_b32 s33, s32, 0xff\ns_mov_b32 s48, 0xffffff00\nv_mov_b32 v12, s33")
    def gublock():
        a("s_add_u32 s69, s28, 7\ns_and_b32 s69, s69, 7\ns_lshl2_add_u32 s68, s69, s64")
    def abuild(dst, srcs, par):
        for u in range(4):
            a(f"v_perm_b32 v{dst+u}, v{srcs[u]}, v{srcs[u]}, v{4+2*u+par}")
    def tagregs(r0, n=4, tag=12):
        for r in range(n): a(f"v_and_or_b32 v{r0+r}, v{r0+r}, s48, v{tag}")
    npub = [0]
    def publish(r0, vaddr, soff, n=4, then=None):
        npub[0] += 1; k = npub[0]
        op = f"buffer_store_dwordx4 v[{r0}:{r0+3}]" if n == 4 else f"buffer_store_dword v{r0}"
        if local:
            a(f"s_cmp_eq_u32 s67, 2\ns_cbranch_scc0 L_pl{k}\n{op}, v{vaddr}, s[36:39], s{soff} offen\ns_branch L_pd{k}\nL_pl{k}:\n{op}, v{vaddr}, s[36:39], s{soff} offen sc1\nL_pd{k}:")
        else:
            a(f"{op}, v{vaddr}, s[36:39], s{soff} offen sc1")
    def untag(src, dst, n, acc, tag=12):
        for r in range(n): a(f"v_xor_b32 v{dst+r}, v{tag}, v{src+r}")
        a(f"v_or_b32 v{acc}, v{dst}, v{dst+1}")
        for r in range(2, n, 2): a(f"v_or3_b32 v{acc}, v{acc}, v{dst+r}, v{dst+r+1}")
        a(f"v_and_b32 v{acc}, 0xff, v{acc}\nv_cmp_ne_u32 vcc, 0, v{acc}")
    def untag_check(src, dst, n, acc, label, sleep=0, tag=12):
        untag(src, dst, n, acc, tag)
        a(f"s_cbranch_vccz {label}_ok")
        if sleep: a(f"s_sleep {sleep}")
        a(f"s_sub_u32 s49, s49, 1\ns_cbranch_scc0 {label}\ns_endpgm\n{label}_ok:")
    def ldswait(label, addr, off, tmp, cmp, val, sleep=1):
        a(f"{label}:\nds_read_b32 v{tmp}, v{addr} offset:{off}\ns_waitcnt lgkmcnt(0)\nv_cmp_{cmp}_u32 vcc, {val}, v{tmp}\ns_cbranch_vccnz {label}_ok\ns_sleep {sleep}\ns_sub_u32 s49, s49, 1\ns_cbranch_scc0 {label}\ns_endpgm\n{label}_ok:")
    def dpp(op, d, s0, s1, ctl, rm="0xf"):
        a(f"{op}_dpp v{d}, v{s0}, v{s1} {ctl} row_mask:{rm} bank_mask:0xf")
    def wavereduce(op, v, sdst):
        for ctl in ("row_ror:8", "row_ror:4", "row_ror:2", "row_ror:1"):
            a("s_nop 1"); dpp(op, v, v, v, ctl)
        a("s_nop 1"); dpp(op, v, v, v, "row_bcast:15", "0xa")
        a("s_nop 1"); dpp(op, v, v, v, "row_bcast:31", "0xc")
        a(f"s_nop 0\nv_readlane_b32 s{sdst}, v{v}, 63\ns_nop 1")
    def bfround(d, s):
        a(f"v_cvt_pk_bf16_f32 v{d}, v{s}, v{s}\nv_lshlrev_b32 v{d}, 16, v{d}")
    def pkadd(d, x, y):
        a(f"v_pk_add_f32 v[{d}:{d+1}], v[{x}:{x+1}], v[{y}:{y+1}]")
    def sum4(r0):
        for r in (0, 2): pkadd(r0 + r, r0 + r, r0 + 4 + r); pkadd(r0 + 8 + r, r0 + 8 + r, r0 + 12 + r)
        for r in (0, 2): pkadd(r0 + r, r0 + r, r0 + 8 + r)
    def xreduce(r0, ror4=True):
        a(f"""s_nop 1
        v_permlane32_swap_b32 v{r0}, v{r0+2}
        v_permlane32_swap_b32 v{r0+1}, v{r0+3}""")
        pkadd(r0, r0, r0 + 2)
        a(f"""s_nop 1
        v_permlane16_swap_b32 v{r0}, v{r0+1}
        v_add_f32 v{r0}, v{r0}, v{r0+1}
        s_nop 1""")
        dpp("v_add_f32", r0, r0, r0, "row_ror:8")
        if ror4:
            a("s_nop 1")
            dpp("v_add_f32", r0, r0, r0, "row_ror:4")
    def slot():
        a("s_mul_i32 s65, s64, 3\ns_add_u32 s65, s65, s31\ns_sub_u32 s65, s65, 5")

    if stamps or AMP: a("s_memrealtime s[76:77]")
    a(f"""s_load_dwordx2 s[40:41], s[0:1], 24
    s_load_dwordx16 s[4:19], s[0:1], 0
    s_load_dwordx2 s[36:37], s[0:1], 96
    v_lshrrev_b32 v1, 6, v0
    v_bfe_u32 v2, v0, 4, 2
    v_readfirstlane_b32 s3, v1
    v_and_b32 v3, 15, v0""")
    if RX: a(f"s_add_u32 s28, s2, {RX}\ns_and_b32 s28, s28, 7")
    else: a("s_and_b32 s28, s2, 7")
    a(f"""s_lshr_b32 s64, s2, 6
    s_bfe_u32 s31, s2, 0x30003
    {mapcode(MAP, 30, 28, 64, 52)}
    s_cmp_ge_u32 s2, 256
    s_cbranch_scc1 L_end
    s_mov_b32 s43, 0x20000
    s_and_b32 s34, s3, 3
    s_cmp_ge_u32 s3, 4
    s_cbranch_scc1 L_H""")
    VB = 64
    a(f"""s_mov_b32 s42, 5242880
    v_mul_u32_u24 v13, {5*8192//16}, v2
    v_add_lshl_u32 v13, v13, v3, 4
    s_lshl2_add_u32 s51, s31, s34
    s_mul_i32 s35, s51, {20*8192}
    s_lshl_b32 s52, s30, 8
    s_add_u32 s35, s35, s52
    s_waitcnt lgkmcnt(0)""")
    for t in range(5):
        a(f"buffer_load_dwordx4 v[{VB+4*t}:{VB+3+4*t}], v13, s[40:43], s35 offen {pol}")
        if t < 4: a("s_add_u32 s35, s35, 8192")
    txcode = {0: "s_nop 0",
              1: "s_lshl_b32 s52, s64, 3\ns_xor_b32 s35, s35, s52",
              2: "s_lshl_b32 s52, s28, 2\ns_xor_b32 s35, s35, s52",
              3: "s_lshl_b32 s52, s31, 2\ns_xor_b32 s35, s35, s52",
              4: "s_lshl_b32 s52, s64, 2\ns_xor_b32 s35, s35, s52",
              5: "s_xor_b32 s35, s35, s64",
              6: "s_lshl1_add_u32 s52, s64, s28\ns_and_b32 s52, s52, 7\ns_lshl_b32 s52, s52, 2\ns_xor_b32 s35, s35, s52",
              7: "s_lshl_b32 s52, s34, 3\ns_xor_b32 s35, s35, s52",
              }[TX]
    a(f"""v_lshrrev_b32 v13, 3, v3
    v_mul_u32_u24 v13, 1280, v13
    v_mul_u32_u24 v14, 10, v2
    v_and_b32 v14, -4, v14
    s_mul_i32 s35, s51, 40
    v_add3_u32 v13, v13, v14, s35
    global_load_dwordx3 v[16:18], v13, s[4:5]
    s_setprio {LPRIO}
    s_lshr_b32 s35, s31, 2
    s_lshl_b32 s35, s35, 5
    s_add_u32 s35, s35, s30
    s_lshl_b32 s35, s35, 4
    s_and_b32 s52, s31, 3
    s_add_u32 s35, s35, s52
    s_add_u32 s35, s35, 12
    s_lshl_b32 s35, s35, 5
    s_add_u32 s35, s35, s34
    {txcode}
    s_lshl_b32 s35, s35, 12
    s_mov_b32 s50, s35
    s_lshl_b32 m0, s34, 15
    s_mov_b32 s40, s6
    s_mov_b32 s41, s7
    s_mov_b32 s42, 134217728
    v_lshlrev_b32 v45, 8, v2""")
    if VP: a("v_lshlrev_b32 v44, 2, v2\nv_xor_b32 v44, v44, v3\nv_lshl_add_u32 v48, v44, 4, v45\nv_xor_b32 v49, 16, v48\nv_xor_b32 v50, 32, v48\nv_xor_b32 v51, 48, v48")
    else: a("v_xor_b32 v44, v2, v3\nv_lshl_add_u32 v48, v44, 4, v45\nv_xor_b32 v49, 64, v48\nv_xor_b32 v50, 0x80, v48\nv_xor_b32 v51, 0xc0, v48")
    gublock()
    a(f"""s_cmp_ge_u32 s68, 27
    s_cbranch_scc1 L_nogu
    v_mov_b32 v14, s16
    v_mov_b32 v15, s17
    v_mov_b32 v20, s18
    v_mov_b32 v21, s19
    v_cmp_gt_u32 vcc, 8, v3
    v_and_b32 v22, 7, v3
    v_lshlrev_b32 v22, 4, v22
    v_cndmask_b32 v14, v20, v14, vcc
    v_cndmask_b32 v15, v21, v15, vcc
    s_mul_i32 s53, s51, {20*3456}
    s_lshl_b32 s52, s68, 7
    s_add_u32 s53, s53, s52
    v_mul_u32_u24 v23, {5*3456}, v2
    v_add3_u32 v22, v22, v23, s53
    v_mov_b32 v23, 0
    s_mov_b32 s52, 3456
    s_mov_b32 s53, 0
    v_lshl_add_u64 v[14:15], v[22:23], 0, v[14:15]""")
    for t in range(5):
        if 6 + t >= W0: a(f"s_waitcnt vmcnt({W0-1})")
        a(f"global_load_dwordx4 v[{VB+20+4*t}:{VB+23+4*t}], v[14:15], off {pol}")
        if t < 4: a("v_lshl_add_u64 v[14:15], v[14:15], 0, s[52:53]")
    a("L_nogu:")
    pvdone = 0
    def pvstep(i, wait=None):
        A = 32 + 4 * (i & 1)
        abuild(A, [16 + i // 2] * 4, i & 1)
        a(f"s_nop 0\ns_waitcnt vmcnt({wait})" if wait is not None else "s_nop 1")
        a(f"v_mfma_f32_16x16x32_bf16 v[40:43], v[{A}:{A+3}], v[{VB+4*i}:{VB+3+4*i}], {'0' if i == 0 else 'v[40:43]'}")
    gosig = "s_mov_b64 exec, 1\nds_add_u32 v14, v54 offset:20\ns_mov_b64 exec, -1"
    NT = max(MLG, ET + (E - 1) // EB)
    assert W + 3 + 4 * (NT - 1) <= 63
    for n in range(64):
        a(f"s_waitcnt vmcnt({(W0 if n <= WR else (W - 1 if (WF and n % WF == 0 and n < WFN) else W))-1})")
        if n == 0: sstamp(4)
        if n < 32:
            a(f"buffer_load_dwordx4 v{48+n%4}, s[40:43], s35 offen offset:{1024*(n%4)} {pol} lds")
            if n % 4 == 3 and n < 31: a(f"s_add_u32 m0, m0, 4096\ns_xor_b32 s35, s35, {((n//4) ^ (n//4+1)) << 14}")
            if n == 31: sstamp(1)
        else:
            i = n - 32
            a(f"buffer_load_dwordx4 v[{VB+4*i}:{VB+3+4*i}], v13, s[44:47], s50 offen offset:{(1024 if VP else 256)*(i%4)} {pol}")
            if i % 4 == 3 and i < 31: a(f"s_xor_b32 s50, s50, {((i//4) ^ (i//4+1)) << 14}")
        if n == 0:
            if stamps:
                for k in (1, 2, 3, 5, 6, 7, 8, 9): a(f"s_mov_b64 s[{76+2*k}:{77+2*k}], 0")
            a(f"""s_load_dword s32, s[36:37], 0
            s_barrier
            v_and_b32 v1, 63, v0
            s_mov_b32 s38, 536870912
            s_mov_b32 s39, 0x20000
            s_mov_b32 s49, {SPIN}
            s_lshl3_add_u32 s29, s30, s31
            v_mov_b32 v14, {L_FLAG}
            v_lshl_add_u32 v15, s34, 2, v14
            v_lshlrev_b32 v13, {8 if VP else 10}, v2
            v_lshl_add_u32 v13, v3, 4, v13
            v_mov_b32 v45, 0
            v_mov_b32 v54, 1""")
            srd(44, 8, 134217728)
        if n == 1: selectors(20)
        if n == 2:
            a(f"""v_and_b32 v19, 1, v2
            v_lshlrev_b32 v19, 4, v19
            s_lshl_b32 s52, s34, 11
            s_add_u32 s52, s52, {L_OK}
            v_lshl_add_u32 v46, v1, 4, s52""")
        if n == W - 1:
            a("v_alignbit_b32 v20, v17, v16, v19\nv_alignbit_b32 v21, v18, v17, v19\nv_alignbit_b32 v22, v18, v18, v19")
        if W - 1 <= n < W + 2:
            ts = {0: (0, 1), 1: (2, 3), 2: (4,)}[n - (W - 1)]
            for t in ts:
                A = 32 + 4 * (t & 1)
                abuild(A, [20 + t // 2] * 4, t & 1)
                a("s_nop 1")
                a(f"v_mfma_f32_16x16x32_bf16 v[24:27], v[{A}:{A+3}], v[{VB+4*t}:{VB+3+4*t}], {'0' if t == 0 else 'v[24:27]'}")
                a(f"v_mfma_f32_16x16x32_bf16 v[28:31], v[{A}:{A+3}], v[{VB+20+4*t}:{VB+23+4*t}], {'0' if t == 0 else 'v[28:31]'}")
            if ts == (4,):
                a("""s_nop 7
                ds_write_b128 v46, v[24:27]
                ds_write_b128 v46, v[28:31] offset:1024
                s_mov_b64 exec, 1
                ds_add_u32 v14, v54 offset:12
                s_mov_b64 exec, -1""")
        if n == W + 8:
            gettag()
            slot()
            a("v_xor_b32 v61, 0x80, v12")
        if n >= W + 3 and (n - W - 3) % 4 == 0 and (n - W - 3) // 4 < NT:
            a("v_add_u32 v45, 1, v45\nds_write_b32 v15, v45 offset:32")
        if n == 32 + NP - 1:
            a(f"s_lshl_b32 s54, s34, 8\ns_add_u32 s54, s54, {L_P}\nv_lshl_add_u32 v46, v2, 6, s54\nv_lshl_add_u32 v47, s34, 3, v14")
            ldswait("L_pwait", 14, 16, 44, "le", 4, sleep=1)
            sstamp(5)
            for k in range(4): a(f"ds_read_b128 v[{16+4*k}:{19+4*k}], v46 offset:{16*k}")
            a(f"ds_read_b128 v[48:51], v14 offset:{L_ML-L_FLAG}\nds_read_b128 v[56:59], v14 offset:{L_ML-L_FLAG+16}\nds_read_b32 v47, v47 offset:{L_ML-L_FLAG}\nds_read_b32 v44, v14 offset:48")
        if n == 32 + NP:
            a(f"""s_waitcnt lgkmcnt(0)
            v_max_f32 v60, v48, v50
            v_max3_f32 v60, v60, v56, v58
            v_readfirstlane_b32 s67, v44
            v_sub_f32 v47, v47, v60
            v_mul_f32 v47, {LOG2E:#x}, v47
            v_exp_f32 v47, v47
            v_and_b32 v52, 31, v1
            v_lshlrev_b32 v52, 4, v52
            v_add_u32 v52, {L_OV}, v52
            s_lshl_b32 s54, s34, 9
            v_add_u32 v53, s54, v52
            v_lshlrev_b32 v55, 4, v2
            v_lshl_add_u32 v55, v3, 5, v55
            s_lshr_b32 s54, s31, 2
            s_lshl1_add_u32 s55, s29, s54
            s_lshl_b32 s55, s55, 9
            s_add_u32 s55, s55, {WS_QP}""")
        if P2D >= W and n == 63 - (P2D - W): a(gosig)
        if P2W is not None and P2W >= W and n == 63 - (P2W - W): a(gosig.replace("offset:20", "offset:52"))
        if n == NW:
            a("L_wwait:\nds_read_b64 v[56:57], v14 offset:56\ns_waitcnt lgkmcnt(0)\nv_cmp_ne_u32 vcc, 0, v57\ns_cbranch_vccnz L_wwait_ok\ns_sleep 1\ns_sub_u32 s49, s49, 1\ns_cbranch_scc0 L_wwait\ns_endpgm\nL_wwait_ok:\nv_mul_f32 v46, v47, v56\nv_mul_f32 v47, v47, v56")
        if n > 32 + NP:
            lim = min(pvdone + PVRATE, n - 32 - W + 1)
            while pvdone < lim:
                pvstep(pvdone); pvdone += 1
    sstamp(2)
    while pvdone < 32:
        i = pvdone
        pvstep(i, wait=(31 - i) if 31 - i < W else None)
        if i == 31 - P2D and P2D < W: a(gosig)
        if P2W is not None and i == 31 - P2W and 0 <= P2W < W: a(gosig.replace("offset:20", "offset:52"))
        pvdone += 1
    sstamp(3)
    a("""s_mov_b32 exec_hi, 0
    s_nop 6
    v_pk_mul_f32 v[40:41], v[46:47], v[40:41]
    v_pk_mul_f32 v[42:43], v[46:47], v[42:43]
    ds_write_b128 v53, v[40:43]
    s_mov_b32 exec_lo, 1
    ds_add_rtn_u32 v54, v14, v54 offset:4
    s_mov_b32 exec_lo, -1""")
    for k in range(4): a(f"ds_read_b128 v[{16+4*k}:{19+4*k}], v52 offset:{512*k}")
    a("""s_waitcnt lgkmcnt(0)
    v_readfirstlane_b32 s54, v54
    s_cmp_lg_u32 s54, 3
    s_cbranch_scc1 L_notlast""")
    sum4(16)
    tagregs(16, tag=61)
    publish(16, 55, 55)
    sstamp(6)
    a("L_notlast:")
    amp_pub()
    if RM and SPL:
        a(f"s_cmp_lg_u32 s28, 0\ns_cbranch_scc1 {END}\ns_cmp_ge_u32 s31, 5\ns_cbranch_scc1 {END}\ns_mov_b64 exec, -1")
        ldswait("L_kgate", 14, 8, 44, "le", SPL, sleep=1)
    elif RM: a("s_branch L_flush" if stamps else "s_endpgm")
    else: a(f"s_cmp_lg_u32 s28, 0\ns_cbranch_scc1 {END}\ns_cmp_lt_u32 s31, 5\ns_cbranch_scc1 {END}\ns_cmp_ge_u32 s65, 10\ns_cbranch_scc1 {END}")
    rhocode = "s_lshl3_add_u32 s58, s65, s3" if RM == 0 else "s_mul_i32 s58, s64, 5\ns_add_u32 s58, s58, s31\ns_lshl2_add_u32 s58, s58, s34"
    a("L_R:")
    a(f"""s_mov_b64 exec, -1
    s_load_dwordx2 s[40:41], s[0:1], 80
    v_mov_b32 v13, {L_FLAG}
    ds_read_b64 v[62:63], v13 offset:24
    {"ds_read_b32 v22, v13 offset:52" if HM == 2 else "s_nop 0"}
    s_mov_b32 s42, 2560
    v_lshrrev_b32 v13, 2, v1
    v_and_b32 v14, 8, v13
    {"s_nop 0" if HM is None else "v_add_u32 v13, v13, v14"}
    v_and_b32 v14, 3, v1
    v_lshlrev_b32 v13, 10, v13
    v_lshl_add_u32 v13, v14, 4, v13
    {rhocode}
    s_lshr_b32 s59, s58, 4
    s_bfe_u32 s52, s58, 0x10003
    s_lshl_b32 s53, s59, {16 if HM is None else 17}
    s_and_b32 s54, s58, 15
    s_lshl_b32 s54, s54, 6
    s_add_u32 s53, s53, s54
    s_add_u32 s53, s53, {WS_P2}
    s_add_u32 s54, s53, {16384 if HM is None else 32768}
    s_add_u32 s55, s53, {32768 if HM is None else 65536}
    v_lshl_add_u32 v14, v14, 2, v2
    v_lshlrev_b32 v14, 1, v14
    s_mul_i32 s65, s52, 1280
    s_lshl_b32 s59, s59, 8
    s_add_u32 s65, s65, s59
    s_and_b32 s52, s58, 7
    s_lshl_b32 s52, s52, 5
    s_add_u32 s65, s65, s52
    v_mov_b32 v36, v12
    v_mov_b32 v37, v12
    v_mov_b32 v38, v12
    v_mov_b32 v39, v12""")
    if HM == 2: a("s_waitcnt lgkmcnt(0)\nv_add_u32 v13, v13, v22")
    if SPL:
        a(f"""s_lshl_b32 s52, s34, 9
        s_add_u32 s52, s52, {L_OK + 4096}
        v_lshl_add_u32 v15, v1, 3, s52
        s_cmp_ge_u32 s3, 4
        s_cbranch_scc1 L_Ra""")
        dbuf = [88 + 4 * q for q in range(DD)]
        a("v_mov_b64 v[40:41], 0\nv_mov_b64 v[42:43], 0\ns_mov_b32 exec_hi, 0xffffff")
        for r in dbuf: a(f"buffer_load_dwordx4 v[{r}:{r+3}], v13, s[36:39], s55 offen sc1\ns_sleep 1")
        a("L_dpoll:")
        for q in range(DD):
            a(f"s_waitcnt vmcnt({DD-1})")
            untag(dbuf[q], 40, 4, 52)
            a(f"s_mov_b64 exec, vcc\ns_cbranch_execz L_dpoll_ok\nbuffer_load_dwordx4 v[{dbuf[q]}:{dbuf[q]+3}], v13, s[36:39], s55 offen sc1\ns_sleep 1")
        a("s_sub_u32 s49, s49, 1\ns_cbranch_scc0 L_dpoll\ns_endpgm\nL_dpoll_ok:\ns_mov_b64 exec, -1")
        xreduce(40)
        bfround(40, 40)
        a("s_waitcnt lgkmcnt(0)\nv_mul_f32 v40, v63, v40")
        bfround(40, 40)
        a("v_mov_b32 v41, s32\nds_write_b64 v15, v[40:41]")
        sstamp(7)
        a(f"s_branch {END}\nL_Ra:")
        def aload(r):
            a(f"buffer_load_dwordx4 v[{r}:{r+3}], v13, s[36:39], s53 offen sc1\nbuffer_load_dwordx4 v[{r+4}:{r+7}], v13, s[36:39], s54 offen sc1")
        bufs = [44, 64, 72, 80][:PD]
        for r in bufs:
            aload(r); a("s_sleep 1")
        a("L_apoll:")
        for q in range(PD):
            a(f"s_waitcnt vmcnt({2*(PD-1)})")
            untag(bufs[q], 24, 8, 52)
            a("s_mov_b64 exec, vcc\ns_cbranch_execz L_apoll_ok" if AM else "s_cbranch_vccz L_apoll_ok")
            aload(bufs[q])
            if PSP: a(f"s_sleep {PSP}")
        a("s_sub_u32 s49, s49, 1\ns_cbranch_scc0 L_apoll\ns_endpgm\nL_apoll_ok:")
        if AM: a("s_mov_b64 exec, -1")
        a("ds_read_b64 v[40:41], v15")
        pkadd(24, 24, 28); pkadd(26, 26, 30)
        xreduce(24)
        bfround(24, 24)
        a("s_waitcnt lgkmcnt(0)\nv_mul_f32 v24, v62, v24\nv_cmp_ne_u32 vcc, s32, v41")
        bfround(24, 24)
        a("s_cbranch_vccz L_bok\nL_bw:\nds_read_b64 v[40:41], v15\ns_waitcnt lgkmcnt(0)\nv_cmp_ne_u32 vcc, s32, v41\ns_cbranch_vccz L_bok\ns_sub_u32 s49, s49, 1\ns_cbranch_scc0 L_bw\ns_endpgm\nL_bok:")
        a("v_add_f32 v24, v24, v40\nv_cvt_pk_bf16_f32 v24, v24, v24\nbuffer_store_short v24, v14, s[40:43], s65 offen")
    elif MASK:
        def rload(r):
            a(f"buffer_load_dwordx4 v[{r}:{r+3}], v13, s[36:39], s53 offen sc1\nbuffer_load_dwordx4 v[{r+4}:{r+7}], v13, s[36:39], s54 offen sc1\nbuffer_load_dwordx4 v[{r+8}:{r+11}], v15, s[36:39], s55 offen sc1")
        a("v_min_u32 v15, 55, v1\nv_lshrrev_b32 v15, 2, v15\nv_lshlrev_b32 v15, 10, v15\nv_and_b32 v16, 3, v1\nv_lshl_add_u32 v15, v16, 4, v15")
        bufs = [64 + 12 * q for q in range(PD)]
        for r in bufs:
            rload(r)
            if PSP: a(f"s_sleep {PSP}")
        a("L_apoll:")
        for q in range(PD):
            a(f"s_waitcnt vmcnt({3*(PD-1)})")
            untag(bufs[q], 24, 12, 52)
            a("s_mov_b64 exec, vcc\ns_cbranch_execz L_apoll_ok")
            rload(bufs[q])
            if PSP: a(f"s_sleep {PSP}")
        a("s_sub_u32 s49, s49, 1\ns_cbranch_scc0 L_apoll\ns_endpgm\nL_apoll_ok:")
        a("s_mov_b32 exec_hi, 0xff000000\nv_mov_b64 v[32:33], 0\nv_mov_b64 v[34:35], 0\ns_mov_b64 exec, -1")
        pkadd(24, 24, 28); pkadd(26, 26, 30)
        a("""v_permlane32_swap_b32 v32, v34
        v_permlane32_swap_b32 v33, v35
        v_permlane32_swap_b32 v24, v26
        v_permlane32_swap_b32 v25, v27""")
        pkadd(32, 32, 34); pkadd(24, 24, 26)
        a("""s_nop 0
        v_permlane16_swap_b32 v32, v33
        v_permlane16_swap_b32 v24, v25
        v_add_f32 v25, v24, v25
        v_add_f32 v24, v32, v33
        s_nop 0""")
        for c in ("row_ror:8", "row_ror:4"):
            dpp("v_add_f32", 25, 25, 25, c); dpp("v_add_f32", 24, 24, 24, c)
            if c == "row_ror:8": a("s_nop 0")
        a("""v_cvt_pk_bf16_f32 v24, v25, v24
        s_waitcnt lgkmcnt(0)
        v_and_b32 v25, 0xffff0000, v24
        v_lshlrev_b32 v24, 16, v24
        v_pk_mul_f32 v[24:25], v[62:63], v[24:25]
        v_cvt_pk_bf16_f32 v24, v24, v25
        v_and_b32 v25, 0xffff0000, v24
        v_lshlrev_b32 v24, 16, v24
        v_add_f32 v24, v24, v25
        v_cvt_pk_bf16_f32 v24, v24, v24
        buffer_store_short v24, v14, s[40:43], s65 offen""")
    else:
        def aload(r):
            a(f"buffer_load_dwordx4 v[{r}:{r+3}], v13, s[36:39], s53 offen sc1\nbuffer_load_dwordx4 v[{r+4}:{r+7}], v13, s[36:39], s54 offen sc1")
        bufs = [44, 64, 72, 80][:PD]
        if DM == 0:
            a("L_dpoll:")
            a("""s_mov_b32 exec_hi, 0xffffff
    buffer_load_dwordx4 v[36:39], v13, s[36:39], s55 offen sc1
    s_mov_b32 exec_hi, -1
    buffer_load_dwordx4 v[44:47], v13, s[36:39], s53 offen sc1
    buffer_load_dwordx4 v[48:51], v13, s[36:39], s54 offen sc1
    s_waitcnt vmcnt(0)""")
            untag_check(36, 40, 4, 52, "L_dpoll")
            for r in bufs[1:]: aload(r)
        else:
            dbuf = [88 + 4 * q for q in range(DD)]
            a("v_mov_b64 v[40:41], 0\nv_mov_b64 v[42:43], 0\ns_mov_b32 exec_hi, 0xffffff")
            for r in dbuf: a(f"buffer_load_dwordx4 v[{r}:{r+3}], v13, s[36:39], s55 offen sc1\ns_sleep 1")
            a("L_dpoll:")
            for q in range(DD):
                a(f"s_waitcnt vmcnt({DD-1})")
                untag(dbuf[q], 40, 4, 52)
                a(f"s_cbranch_vccz L_dpoll_ok\nbuffer_load_dwordx4 v[{dbuf[q]}:{dbuf[q]+3}], v13, s[36:39], s55 offen sc1")
                if PSP: a(f"s_sleep {PSP}")
            a("s_sub_u32 s49, s49, 1\ns_cbranch_scc0 L_dpoll\ns_endpgm\nL_dpoll_ok:\ns_mov_b32 exec_hi, -1")
            aload(bufs[0])
        xreduce(40)
        bfround(40, 40)
        a("s_waitcnt lgkmcnt(0)\nv_mul_f32 v63, v63, v40")
        bfround(63, 63)
        sstamp(7)
        if DM:
            for r in bufs[1:]: aload(r)
        if PD == 1:
            if DM: a("s_waitcnt vmcnt(0)")
            a("s_branch L_acheck\nL_apoll:")
            aload(44)
            a("s_waitcnt vmcnt(0)\nL_acheck:")
            untag_check(44, 24, 8, 52, "L_apoll")
        else:
            a("L_apoll:")
            for q in range(PD):
                a(f"s_waitcnt vmcnt({2*(PD-1)})")
                untag(bufs[q], 24, 8, 52)
                a("s_cbranch_vccz L_apoll_ok")
                aload(bufs[q])
                if PSP: a(f"s_sleep {PSP}")
            a("s_sub_u32 s49, s49, 1\ns_cbranch_scc0 L_apoll\ns_endpgm\nL_apoll_ok:")
        pkadd(24, 24, 28); pkadd(26, 26, 30)
        xreduce(24)
        bfround(24, 24)
        a("v_mul_f32 v24, v62, v24")
        bfround(24, 24)
        a("v_add_f32 v24, v24, v63\nv_cvt_pk_bf16_f32 v24, v24, v24\nbuffer_store_short v24, v14, s[40:43], s65 offen")
    amp_spin()
    sstamp(8)
    a(f"s_cmp_lg_u32 s65, 0\ns_cbranch_scc1 {END}")
    a("v_mov_b32 v33, s32\nv_mov_b32 v34, 0\ns_mov_b64 exec, 1\nbuffer_store_dword v33, v34, s[36:39], 0 offen")
    flushall()
    a("L_end:\ns_endpgm")

    a("L_H:")
    if stamps:
        for k in range(1, 10): a(f"s_mov_b64 s[{76+2*k}:{77+2*k}], 0")
    a(f"""s_load_dwordx8 s[20:27], s[0:1], 64
    v_mov_b32 v4, 0
    v_mov_b32 v5, 0
    v_mov_b32 v24, {L_FLAG}
    v_lshl_add_u32 v15, v3, 3, v24
    ds_write_b64 v15, v[4:5]
    s_mov_b32 s38, 536870912
    s_mov_b32 s39, 0x20000
    s_mov_b32 s42, 5242880
    s_mov_b32 s49, {SPIN}
    s_lshl3_add_u32 s29, s30, s31
    v_and_b32 v1, 63, v0
    v_lshl_add_u32 v25, s34, 2, v24
    s_waitcnt lgkmcnt(0)
    s_load_dword s32, s[36:37], 0""")
    gublock()
    slot()
    selectors(20)
    gettag()
    a("s_cmp_eq_u32 s34, 0\ns_cbranch_scc0 L_hbar")
    a(f"""s_getreg_b32 s66, hwreg(HW_REG_XCC_ID, 0, 8)
    v_mov_b32 v32, s32
    v_mov_b32 v33, s66
    s_lshr_b32 s52, s2, 3
    v_mov_b32 v34, s52
    v_lshlrev_b32 v34, 3, v34
    s_lshl_b32 s53, s28, 8
    s_add_u32 s53, s53, {WS_HI}
    s_mov_b64 exec, 1
    buffer_store_dwordx2 v[32:33], v34, s[36:39], s53 offen
    s_mov_b64 exec, -1""")
    a("L_hbar:\ns_barrier")
    a("s_cmp_eq_u32 s34, 0\ns_cbranch_scc1 L_hlast\ns_cmp_eq_u32 s34, 1\ns_cbranch_scc1 L_h1")
    if HM == 2:
        offs = [i * 256 + ((i & 1) << 12) + (((i >> 1) & 1) << 14) for i in range(5)]
        a(f"s_lshl2_add_u32 s52, s29, s34\ns_cmp_lg_u32 s52, 2\ns_cbranch_scc1 L_hq\ns_add_u32 s52, s36, {WS_RC}\ns_addc_u32 s53, s37, 0")
        for o in offs: a(f"s_load_dword s54, s[52:53], {o} glc\ns_load_dword s55, s[52:53], {o + 8192} glc")
        a("s_mov_b32 s57, 0\ns_waitcnt lgkmcnt(0)")
        for o in offs:
            a(f"s_mov_b32 s55, s32\ns_load_dword s54, s[52:53], {o} glc\ns_load_dword s55, s[52:53], {o + 8192} glc\ns_waitcnt lgkmcnt(1)\ns_nop 3\ns_mov_b32 s56, s55\ns_waitcnt lgkmcnt(0)\ns_cmp_eq_u32 s56, s55\ns_addc_u32 s57, s57, 0")
        a(f"""s_cmp_ge_u32 s57, 3
        s_cselect_b32 s56, 8192, 0
        v_or_b32 v32, s56, v12
        v_mov_b32 v33, v12
        v_mov_b32 v34, v12
        v_mov_b32 v35, v12
        v_mov_b32 v36, {WS_CH}
        s_mov_b64 exec, 1
        buffer_store_dwordx4 v[32:35], v36, s[36:39], 0 offen sc1""")
        if DBG: a("v_mov_b32 v37, s57\nv_mov_b32 v38, 60\nglobal_store_dword v38, v37, s[26:27]")
        a("s_mov_b64 exec, -1")
    a("s_branch L_hq\nL_h1:")
    if pf:
        a("s_getpc_b64 s[52:53]\nL_pc:\ns_sub_u32 s52, s52, L_pc-" + KN + "_kernel\ns_subb_u32 s53, s53, 0\nv_lshlrev_b32 v44, 7, v1\nglobal_load_dword v45, v44, s[52:53]\ns_add_u32 s52, s52, 8192\ns_addc_u32 s53, s53, 0\ns_mov_b64 exec, 0xffff\nglobal_load_dword v45, v44, s[52:53]\ns_mov_b64 exec, -1")
    a("s_cmp_lg_u32 s28, 0\ns_cbranch_scc1 L_hq0")
    if RM == 0: a("s_cmp_lt_u32 s31, 5\ns_cbranch_scc1 L_hq0\ns_and_b32 s52, s65, 1")
    else: a("s_cmp_ge_u32 s31, 5\ns_cbranch_scc1 L_hq0\ns_mul_i32 s52, s64, 5\ns_add_u32 s52, s52, s31\ns_bfe_u32 s52, s52, 0x10001")
    a("""s_nop 0
    s_mul_i32 s52, s52, 1280
    v_mul_u32_u24 v44, 20, v1
    v_add_u32 v46, s52, v44
    v_mov_b32 v47, 0
    global_load_dwordx4 v[32:35], v46, s[4:5]
    global_load_dword v36, v46, s[4:5] offset:16
    global_load_dwordx4 v[40:43], v44, s[22:23]
    global_load_dword v44, v44, s[22:23] offset:16
    global_load_dword v45, v47, s[24:25]
    v_mov_b32 v62, 0
    s_waitcnt vmcnt(0)""")
    for k in range(5):
        a(f"""v_lshlrev_b32 v48, 16, v{32+k}
        v_and_b32 v49, 0xffff0000, v{32+k}
        v_lshlrev_b32 v50, 16, v{40+k}
        v_and_b32 v51, 0xffff0000, v{40+k}
        v_mul_f32 v48, v48, v50
        v_mul_f32 v49, v49, v51
        v_cvt_pk_bf16_f32 v48, v48, v49
        v_and_b32 v49, 0xffff0000, v48
        v_lshlrev_b32 v48, 16, v48
        v_add_f32 v62, v62, v49
        v_add_f32 v62, v62, v48""")
    wavereduce("v_add_f32", 62, 51)
    a("v_mov_b32 v62, s51")
    bfround(62, 62)
    a(f"v_mul_f32 v62, {LOG2E | 0x80000000:#x}, v62\nv_exp_f32 v62, v62\ns_nop 0\nv_add_f32 v62, 1.0, v62\nv_rcp_f32 v62, v62\ns_nop 0")
    bfround(62, 62)
    a("v_sub_f32 v63, 1.0, v62")
    bfround(63, 63)
    a("ds_write_b64 v24, v[62:63] offset:24")
    a("L_hq0:\ns_waitcnt vmcnt(0)\ns_branch L_hq")
    a("L_hlast:")
    a(f"""v_and_b32 v34, 31, v1
    v_lshlrev_b32 v34, 3, v34
    v_lshlrev_b32 v15, 4, v1
    v_add_u32 v14, {L_OK}, v15
    s_mov_b32 s54, 2
L_hello:
    buffer_load_dwordx2 v[36:37], v34, s[36:39], s53 offen sc1
    s_waitcnt vmcnt(0)
    v_cmp_ne_u64 vcc, v[36:37], v[32:33]
    s_cbranch_vccz L_hellod
    s_sub_u32 s54, s54, 1
    s_cbranch_scc0 L_hello
L_hellod:
    s_lshl_b32 s52, s29, 10
    s_add_u32 s52, s52, {WS_QP}
    s_add_u32 s53, s52, {WS_GP-WS_QP}
    v_and_b32 v16, 7, v3
    v_lshlrev_b32 v16, 7, v16
    v_lshrrev_b32 v17, 3, v3
    v_lshl_add_u32 v16, v17, 6, v16
    v_lshl_add_u32 v16, v2, 4, v16
    s_cmp_eq_u64 vcc, 0
    s_cselect_b32 s67, 2, 1
    v_mov_b32 v33, s67
    ds_write_b32 v24, v33 offset:48""")
    ldswait("L_p1wait", 24, 12, 26, "le", 4, sleep=1)
    for k in range(4): a(f"ds_read_b128 v[{32+4*k}:{35+4*k}], v14 offset:{2048*k}")
    for k in range(4): a(f"ds_read_b128 v[{48+4*k}:{51+4*k}], v14 offset:{2048*k+1024}")
    a("s_waitcnt lgkmcnt(4)")
    sum4(32); tagregs(32)
    publish(32, 15, 52)
    a("s_waitcnt lgkmcnt(0)\ns_cmp_ge_u32 s68, 27\ns_cbranch_scc1 L_nogu2")
    sum4(48); tagregs(48)
    publish(48, 16, 53)
    a("L_nogu2:")
    sstamp(1)
    a(f"""v_lshrrev_b32 v14, 5, v1
    v_and_b32 v15, 31, v1
    v_lshlrev_b32 v13, 10, v14
    v_lshl_add_u32 v13, v15, 4, v13
    s_lshr_b32 s53, s31, 2
    s_lshl_b32 s53, s53, 9
    s_lshl_b32 s52, s30, 13
    s_add_u32 s52, s52, s53
    s_add_u32 s52, s52, {WS_QP}
    s_add_u32 s53, s52, 4096
    v_and_b32 v15, 1, v2
    v_lshlrev_b32 v15, 3, v15
    v_lshl_add_u32 v15, v3, 4, v15
    v_lshl_add_u32 v15, v14, 2, v15
    v_add_u32 v15, {L_Q}, v15""")
    if QG: ldswait("L_qgate", 25, 32, 26, "le", QG, sleep=2)
    a("L_qpoll:")
    a("""buffer_load_dwordx4 v[32:35], v13, s[36:39], s52 offen sc1
    buffer_load_dwordx4 v[36:39], v13, s[36:39], s52 offen offset:2048 sc1
    buffer_load_dwordx4 v[40:43], v13, s[36:39], s53 offen sc1
    buffer_load_dwordx4 v[44:47], v13, s[36:39], s53 offen offset:2048 sc1
    s_waitcnt vmcnt(0)""")
    untag_check(32, 32, 16, 48, "L_qpoll", sleep=1)
    sum4(32)
    a(f"""s_nop 1
    v_permlane32_swap_b32 v32, v34
    v_permlane32_swap_b32 v33, v35
    v_add_f32 v32, v32, v34
    v_add_f32 v33, v33, v35
    v_cvt_pk_bf16_f32 v32, v32, v33
    v_mov_b32 v33, 1
    ds_write_b32 v15, v32
    ds_write_b32 v24, v33""")
    sstamp(2)
    a(f"""s_cmp_ge_u32 s68, 27
    s_cbranch_scc1 L_hq
    v_lshrrev_b32 v13, 3, v1
    v_lshlrev_b32 v13, 10, v13
    v_and_b32 v14, 7, v1
    v_lshl_add_u32 v13, v14, 4, v13
    s_lshl_b32 s52, s30, 13
    s_lshl_b32 s53, s31, 7
    s_add_u32 s52, s52, s53
    s_add_u32 s52, s52, {WS_GP}
    v_lshlrev_b32 v14, 4, v14
    v_lshl_add_u32 v14, v2, 2, v14
    s_lshl3_add_u32 s53, s68, s31
    s_lshl_b32 s53, s53, 6
    s_add_u32 s53, s53, {WS_HP}""")
    a("L_gpoll:\nbuffer_load_dwordx4 v[32:35], v13, s[36:39], s52 offen sc1\ns_waitcnt vmcnt(0)")
    untag_check(32, 32, 4, 48, "L_gpoll", sleep=1)
    xreduce(32, ror4=False)
    bfround(32, 32)
    a("""v_mul_f32 v48, v32, v32
    v_mul_f32 v48, 0x3d372713, v48
    v_mov_b32_dpp v33, v32 row_shl:4 row_mask:0xf bank_mask:0xf
    v_fma_f32 v48, v48, v32, v32
    v_mul_f32 v48, 0xc0135761, v48
    v_exp_f32 v48, v48
    s_nop 0
    v_add_f32 v48, 1.0, v48
    v_rcp_f32 v48, v48
    s_nop 0
    v_mul_f32 v32, v32, v48""")
    bfround(32, 32)
    a("v_mul_f32 v32, v32, v33")
    bfround(32, 32)
    a("v_or_b32 v32, v32, v12\ns_mov_b32 exec_lo, 0x000f000f\ns_mov_b32 exec_hi, 0x000f000f")
    publish(32, 14, 53, n=1)
    a("s_mov_b64 exec, -1")
    a("L_hq:")
    a("s_lshl_b32 s51, s34, 15")
    if VP: a("v_and_b32 v21, 3, v3\nv_lshrrev_b32 v22, 2, v3\nv_lshl_add_u32 v21, v21, 2, v22\nv_lshlrev_b32 v21, 8, v21")
    else: a("v_lshlrev_b32 v21, 8, v3")
    a("""s_nop 0
    v_xor_b32 v22, v2, v3
    v_lshlrev_b32 v22, 4, v22
    v_add3_u32 v17, v21, v22, s51
    v_xor_b32 v18, 64, v17
    v_xor_b32 v19, 0x80, v17
    v_xor_b32 v20, 0xc0, v17""")
    a(f"v_lshlrev_b32 v23, 4, v2\nv_add_u32 v23, {L_Q}, v23")
    ldswait("L_qwait", 24, 0, 26, "ne", 0, sleep=2)
    for t in range(4): a(f"ds_read_b128 v[{32+4*t}:{35+4*t}], v23 offset:{64*t}")
    a("ds_read_b32 v27, v24 offset:48\ns_mov_b32 s52, 0x00010001\ns_mov_b32 s53, 0x00010001\ns_mov_b32 s56, 0")
    ldswait("L_qk", 25, 32, 26, "lt", "s56", sleep=2)
    for t in range(4): a(f"ds_read_b128 v[{48+4*t}:{51+4*t}], v{17+t}")
    for t in range(4): a(f"v_add_u32 v{17+t}, 4096, v{17+t}")
    a("s_lshl_b64 s[54:55], s[52:53], 1\ns_add_u32 s56, s56, 1")
    for t in range(4):
        a(f"s_waitcnt lgkmcnt({3-t})\nv_mfma_f32_16x16x32_bf16 v[64:67], v[{48+4*t}:{51+4*t}], v[{32+4*t}:{35+4*t}], {'0' if t == 0 else 'v[64:67]'}")
    a("""s_nop 7
    v_cndmask_b32 v68, v68, v64, s[52:53]
    v_cndmask_b32 v69, v69, v65, s[52:53]
    v_cndmask_b32 v68, v68, v66, s[54:55]
    v_cndmask_b32 v69, v69, v67, s[54:55]
    s_lshl_b64 s[52:53], s[52:53], 2
    s_cmp_lt_u32 s56, 8
    s_cbranch_scc1 L_qk""")
    a(f"""v_readfirstlane_b32 s67, v27
    v_cvt_pk_bf16_f32 v68, v68, v69
    v_and_b32 v69, 0xffff0000, v68
    v_lshlrev_b32 v68, 16, v68
    v_mul_f32 v68, {SCALE:#x}, v68
    v_mul_f32 v69, {SCALE:#x}, v69
    v_cvt_pk_bf16_f32 v68, v68, v69
    v_and_b32 v69, 0xffff0000, v68
    v_lshlrev_b32 v68, 16, v68
    v_max_f32 v70, v68, v69""")
    wavereduce("v_max_f32", 70, 52)
    a(f"""v_subrev_f32 v68, s52, v68
    v_subrev_f32 v69, s52, v69
    v_mul_f32 v68, {LOG2E:#x}, v68
    v_mul_f32 v69, {LOG2E:#x}, v69
    v_exp_f32 v68, v68
    v_exp_f32 v69, v69
    s_lshl_b32 s54, s34, 8
    s_add_u32 s54, s54, {L_P}
    v_lshl_add_u32 v22, v1, 2, s54
    v_cvt_pk_bf16_f32 v71, v68, v69
    v_add_f32 v70, v68, v69
    ds_write_b32 v22, v71""")
    wavereduce("v_add_f32", 70, 53)
    a(f"""v_mov_b32 v68, s52
    v_mov_b32 v69, s53
    v_lshl_add_u32 v22, s34, 3, v24
    v_mov_b32 v21, 1
    ds_write_b64 v22, v[68:69] offset:{L_ML-L_FLAG}
    s_mov_b64 exec, 1
    ds_add_rtn_u32 v26, v24, v21 offset:16
    ds_read_b128 v[32:35], v24 offset:{L_ML-L_FLAG}
    ds_read_b128 v[36:39], v24 offset:{L_ML-L_FLAG+16}
    s_waitcnt lgkmcnt(0)
    v_readfirstlane_b32 s54, v26
    s_cmp_lg_u32 s54, 3
    s_cbranch_scc1 L_nomlpub
    v_max_f32 v40, v32, v34
    v_max3_f32 v40, v40, v36, v38""")
    for r in (32, 34, 36, 38):
        a(f"v_sub_f32 v{r}, v{r}, v40\nv_mul_f32 v{r}, {LOG2E:#x}, v{r}\nv_exp_f32 v{r}, v{r}")
    a(f"""v_mul_f32 v41, v32, v33
    v_fmac_f32 v41, v34, v35
    v_fmac_f32 v41, v36, v37
    v_fmac_f32 v41, v38, v39
    v_mov_b32 v42, 0
    v_mov_b32 v43, 0
    v_mov_b32 v44, 0
    s_lshl_b32 s54, s29, 4
    s_add_u32 s54, s54, {WS_ML}""")
    tagregs(40)
    publish(40, 44, 54)
    a("s_mov_b64 exec, -1\nv_and_b32 v15, 3, v1\nv_lshlrev_b32 v15, 4, v15\ns_and_b32 s54, s54, -64\ns_and_b32 s55, s31, 3")
    ldswait("L_mlgate", 25, 32, 26, "le", MLG, sleep=4)
    a("L_mlpoll:")
    a("buffer_load_dwordx4 v[72:75], v15, s[36:39], s54 offen sc1")
    if HM == 2: a(f"v_mov_b32 v76, {WS_CH}\nbuffer_load_dwordx4 v[76:79], v76, s[36:39], 0 offen sc1")
    a("s_waitcnt vmcnt(0)")
    untag_check(72, 72, 8 if HM == 2 else 4, 80, "L_mlpoll", sleep=2)
    if HM == 2: a("ds_write_b32 v24, v76 offset:52")
    dpp("v_max_f32", 74, 72, 72, "quad_perm:[1,0,3,2]")
    a("s_nop 1"); dpp("v_max_f32", 74, 74, 74, "quad_perm:[2,3,0,1]")
    a(f"v_sub_f32 v72, v72, v74\nv_mul_f32 v72, {LOG2E:#x}, v72\nv_exp_f32 v72, v72\ns_nop 0\nv_mul_f32 v73, v72, v73\ns_nop 1")
    dpp("v_add_f32", 73, 73, 73, "quad_perm:[1,0,3,2]")
    a("s_nop 1"); dpp("v_add_f32", 73, 73, 73, "quad_perm:[2,3,0,1]")
    a("v_rcp_f32 v73, v73\ns_lshl_b64 s[54:55], 1, s55\nv_mul_f32 v72, v72, v73\nv_mov_b32 v73, 1\ns_mov_b64 exec, s[54:55]\nds_write_b64 v24, v[72:73] offset:56")
    a("L_nomlpub:\ns_mov_b64 exec, -1")
    sstamp(3)
    a(f"""v_mul_u32_u24 v13, {8*1280}, v2
    v_lshl_add_u32 v13, v3, 4, v13
    v_lshrrev_b32 v14, 3, v3
    v_bfe_u32 v16, v3, 2, 1
    v_lshlrev_b32 v16, 4, v16
    s_cmp_eq_u32 s28, 0
    s_cselect_b32 s67, s67, 1
    s_cmp_ge_u32 s31, 5
    s_cbranch_scc1 L_wdsetup
    s_mov_b32 s40, s12
    s_mov_b32 s41, s13
    s_mov_b32 s56, 0
    s_lshl2_add_u32 s57, s30, s34
    s_mov_b32 s58, s31
    s_mov_b32 s59, s30
    v_and_b32 v17, 3, v3
    v_lshl_add_u32 v15, v14, 2, v17
    v_lshl_add_u32 v16, v2, 5, v16
    v_lshl_add_u32 v16, v15, 10, v16
    v_lshl_add_u32 v16, v14, 9, v16
    v_xor_b32 v27, 0x80, v12
    s_lshl_b32 s60, s30, 13
    s_lshl_b32 s54, s34, 7
    s_add_u32 s60, s60, s54
    s_add_u32 s60, s60, {WS_QP}
    s_branch L_mid""")
    a("L_wdsetup:")
    if WB:
        a("s_lshl2_add_u32 s52, s65, s34\ns_cmp_lg_u32 s52, 44\ns_cbranch_scc1 L_nowb")
        if WB == 1: ldswait("L_wbgate", 24, 4, 26, "le", 4, sleep=2)
        else: ldswait("L_wbgate", 25, 32, 26, "le", MLG, sleep=2)
        a("buffer_wbl2 sc1\ns_waitcnt vmcnt(0)\nL_nowb:")
    a(f"""s_cmp_ge_u32 s65, 10
    s_cbranch_scc1 {END}
    s_cmp_lg_u32 s28, 0
    s_cbranch_scc1 L_wd""")
    if RM == 0:
        ldswait("L_rgate", 24, 4, 26, "le", 4, sleep=2)
        a("s_branch L_R")
    else: a(f"s_branch {END}")
    a("L_wd:")
    a(f"""s_mov_b32 s40, s20
    s_mov_b32 s41, s21
    s_mov_b32 s42, 2211840
    s_cmp_ge_u32 s65, 5
    s_cselect_b32 s55, 1, 0
    s_mul_i32 s58, s55, 5
    s_sub_u32 s58, s65, s58
    s_lshl1_add_u32 s57, s69, s55
    s_add_u32 s59, s57, 32
    s_lshl2_add_u32 s57, s57, s34
    s_mov_b32 s56, 2
    s_cmp_ge_u32 s57, 54
    s_cbranch_scc1 L_mid
    s_mov_b32 s56, 1
    s_lshl_b32 s60, s57, 8
    s_add_u32 s60, s60, {WS_HP}
    v_lshl_add_u32 v16, v14, 5, v16
    v_lshl_add_u32 v16, v2, 6, v16""")
    a("L_hpoll:\nbuffer_load_dwordx4 v[72:75], v16, s[36:39], s60 offen sc1\ns_waitcnt vmcnt(0)")
    untag_check(72, 72, 4, 80, "L_hpoll", sleep=4)
    a("v_cvt_pk_bf16_f32 v28, v72, v73\nv_cvt_pk_bf16_f32 v29, v74, v75\ns_nop 0")
    a("v_mov_b32_dpp v30, v28 row_half_mirror row_mask:0xf bank_mask:0xf\nv_mov_b32_dpp v31, v29 row_half_mirror row_mask:0xf bank_mask:0xf")
    a("L_mid:")
    a(f"""s_lshl_b32 s54, s34, 10
    s_add_u32 s54, s54, {L_OK}
    v_lshl_add_u32 v18, v1, 4, s54
    v_lshlrev_b32 v19, 4, v1
    v_add_u32 v19, {L_OK}, v19
    v_mov_b32 v64, 0
    v_mov_b32 v65, 0
    v_mov_b32 v66, 0
    v_mov_b32 v67, 0
    v_lshrrev_b32 v14, 5, v1
    v_lshlrev_b32 v14, 9, v14
    v_lshl_add_u32 v14, v3, 5, v14
    v_and_b32 v17, 1, v2
    v_lshl_add_u32 v14, v17, 4, v14
    s_lshl_b32 s61, s58, 6
    s_add_u32 s61, s61, s59
    {"s_nop 0" if HM is None else "s_and_b32 s54, s61, -8"}
    {"s_nop 0" if HM is None else "s_add_u32 s61, s61, s54"}
    s_lshl_b32 s61, s61, 10
    s_add_u32 s61, s61, {WS_P2}
    s_mul_i32 s54, s57, {32*1280}
    s_lshl_b32 s55, s58, 8
    s_add_u32 s54, s54, s55
    s_add_u32 s55, s54, {4*1280}""")
    if PT and HM != 2: a("s_lshl_b32 s52, s34, 8\ns_add_u32 s52, s52, s61\nv_lshlrev_b32 v22, 2, v1\nbuffer_load_dword v23, v22, s[36:39], s52 offen")
    a("s_cmp_eq_u32 s56, 2\ns_cbranch_scc1 L_p2red")
    if P2W is not None:
        a("s_cmp_eq_u32 s56, 0\ns_cbranch_scc1 L_p2wo")
        ldswait("L_wdgo", 24, 52 if P2W >= 0 else 4, 26, "le", 4, sleep=1)
        for t in range(8):
            a(f"buffer_load_dwordx4 v[{32+4*t}:{35+4*t}], v13, s[40:43], s{54 + t//4} offen offset:{1280*(t%4)} {pol}")
        if OPD > 1: a("s_waitcnt vmcnt(0)")
        a("s_branch L_p2mm\nL_p2wo:")
    for t in range(8):
        if t < E and t % EB == 0: ldswait(f"L_eg{t}", 25, 32, 26, "le", ET + t // EB, sleep=2)
        if t == E:
            ldswait("L_p2go", 24, 20, 26, "le", 4, sleep=1)
            sstamp(4)
            if PT and HM == 2: a("ds_read_b32 v22, v24 offset:52\ns_lshl_b32 s52, s34, 8\ns_add_u32 s52, s52, s61\ns_waitcnt lgkmcnt(0)\nv_lshl_add_u32 v22, v1, 2, v22\nbuffer_load_dword v23, v22, s[36:39], s52 offen")
        a(f"buffer_load_dwordx4 v[{32+4*t}:{35+4*t}], v13, s[40:43], s{54 + t//4} offen offset:{1280*(t%4)} {pol}")
    if P2W is None:
        assert OPD == 1
        a("s_cmp_eq_u32 s56, 1\ns_cbranch_scc1 L_p2mm")
    if E == 8: ldswait("L_p2go", 24, 20, 26, "le", 4, sleep=1)
    if OPW:
        a(f"s_waitcnt vmcnt({OPW-1})"); sstamp(9)
    if OPD == 1:
        a("L_opoll:")
        a("buffer_load_dwordx4 v[72:75], v16, s[36:39], s60 offen sc1\ns_waitcnt vmcnt(0)")
        untag_check(72, 72, 4, 80, "L_opoll", tag=27)
    else:
        a("buffer_load_dwordx4 v[96:99], v16, s[36:39], s60 offen sc1\ns_sleep 2\nL_opoll:")
        for r0, r1 in ((96, 100), (100, 96)):
            a(f"buffer_load_dwordx4 v[{r1}:{r1+3}], v16, s[36:39], s60 offen sc1\ns_waitcnt vmcnt(1)")
            untag(r0, 72, 4, 80, tag=27)
            a("s_cbranch_vccz L_opoll_ok\ns_sleep 1")
        a("s_sub_u32 s49, s49, 1\ns_cbranch_scc0 L_opoll\ns_endpgm\nL_opoll_ok:")
    sstamp(5)
    for ctl in ("quad_perm:[1,0,3,2]", "quad_perm:[2,3,0,1]"):
        for r in range(4): dpp("v_add_f32", 72 + r, 72 + r, 72 + r, ctl)
    a("v_cvt_pk_bf16_f32 v28, v72, v73\nv_cvt_pk_bf16_f32 v29, v74, v75\ns_nop 0")
    a("v_mov_b32_dpp v30, v28 row_half_mirror row_mask:0xf bank_mask:0xf\nv_mov_b32_dpp v31, v29 row_half_mirror row_mask:0xf bank_mask:0xf")
    a("L_p2mm:")
    def p2build(t):
        k = (t >> 1) & 1
        own, oth = 28 + k, 30 + k
        abuild(84 + 4 * (t % 3), [own, own, oth, oth] if t < 4 else [oth, oth, own, own], t & 1)
    p2build(0)
    for t in range(8):
        if t < 7: p2build(t + 1)
        else: a("s_nop 0")
        if t in (0, 4) and OPD == 1: a(f"s_waitcnt vmcnt({4-t})")
        A = 84 + 4 * (t % 3)
        a(f"v_mfma_f32_16x16x32_bf16 v[64:67], v[{A}:{A+3}], v[{32+4*t}:{35+4*t}], v[64:67]")
    a("s_nop 7")
    a("L_p2red:")
    a("""ds_write_b128 v18, v[64:67]
    s_mov_b64 exec, 1
    ds_add_rtn_u32 v21, v24, v21 offset:8
    s_mov_b64 exec, -1""")
    if HM == 2: a("ds_read_b32 v22, v24 offset:52")
    for k in range(4): a(f"ds_read_b128 v[{32+4*k}:{35+4*k}], v19 offset:{1024*k}")
    if HM == 2: a("s_waitcnt lgkmcnt(4)\nv_add_u32 v14, v14, v22")
    a(f"""s_waitcnt lgkmcnt(0)
    v_readfirstlane_b32 s55, v21
    s_cmp_lg_u32 s55, 3
    s_cbranch_scc1 L_Hend""")
    sum4(32); tagregs(32)
    publish(32, 14, 61)
    sstamp(6)
    a("L_Hend:")
    if RM: a("s_cmp_eq_u32 s28, 0\ns_cbranch_scc1 L_R")
    a("s_branch L_flush" if stamps else "s_endpgm")
    if pf: a(".fill 512, 4, 0xbf800000")
    body = a.text()
    errs = hazard.check(body)
    for e in errs: print("HAZARD", name, e)
    open(name, "w").write(header(256, 512, L_END) + body + footer(256 if stamps else 192, 96))
if __name__ == "__main__":
    gen("m6.s"); gen("m6_st.s", stamps=True)
```
